```python
import torch

def _softmax(x, axis=-1):
    return torch.softmax(x, dim=axis)
def _gelu(x):
    return torch.nn.functional.gelu(x, approximate="tanh")
def _silu(x):
    return torch.nn.functional.silu(x)
def _sigmoid(x):
    return torch.sigmoid(x)
def _layernorm(x, axis=-1, eps=1e-5):
    m = x.mean(dim=axis, keepdim=True)
    v = x.var(dim=axis, keepdim=True, unbiased=False)
    return (x - m) / torch.sqrt(v + eps)
def _scatter_add(tgt, idx, src, axis=0):
    return tgt.clone().index_add_(axis, idx, src)
def _segment_sum(src, seg, n):
    out = torch.zeros((n,) + src.shape[1:], dtype=src.dtype)
    return out.index_add_(0, seg, src)
def _pad(x, pw):
    flat = tuple(v for pair in reversed(pw) for v in pair)
    return torch.nn.functional.pad(x, flat)

kernel_name = 'gated_mix__linear_kernel_hedgehog__sliding_local_dilated__prompt'

def setup_inputs():

    _w = (lambda a: (lambda t: t.to(torch.bfloat16) if t.is_floating_point() else t)(torch.as_tensor(a)))
    def _A_setup():
        B, S, D, H = 1, 2048, 512, 32
        Dh = D // H
        return {
            "x": _w((lambda *s: torch.randn(*s, dtype=torch.bfloat16) * 0.05)(B, S, D)),
            "wqkv": _w((lambda *s: torch.randn(*s, dtype=torch.bfloat16) * 1.6)(D, 3 * D)),
            "w_phi": _w((lambda *s: torch.randn(*s, dtype=torch.bfloat16) * 1.6)(H, Dh, Dh) * (Dh ** -0.5)),
            "wo": _w((lambda *s: torch.randn(*s, dtype=torch.bfloat16) * 0.1)(D, D)),
        }
    _A_in = _A_setup()

    def _B_setup():
        B, S, D = 1, 2048, 512
        return {
            "x": _w((lambda *s: torch.randn(*s, dtype=torch.bfloat16) * 0.05)(B, S, D)),
            "wqkv": _w((lambda *s: torch.randn(*s, dtype=torch.bfloat16) * 0.8)(D, 3 * D)),
            "wo": _w((lambda *s: torch.randn(*s, dtype=torch.bfloat16) * 0.05)(D, D)),
        }
    _B_in = _B_setup()

    return {
        "A_x": _A_in["x"],
        "A_wqkv": _A_in["wqkv"],
        "A_w_phi": _A_in["w_phi"],
        "A_wo": _A_in["wo"],
        "B_x": _B_in["x"],
        "B_wqkv": _B_in["wqkv"],
        "B_wo": _B_in["wo"],
        "gate_w": _w((lambda *s: torch.randn(*s, dtype=torch.bfloat16) * 0.05)(512) * 16.0),
    }

def reference(A_x, A_wqkv, A_w_phi, A_wo, B_x, B_wqkv, B_wo, gate_w):
    def _A_ref(x, wqkv, w_phi, wo):
        B, S, D = x.shape
        H = 32; Dh = D // H
        qkv = (lambda x, *d: x.permute(*d))((x @ wqkv).reshape(B, S, 3, H, Dh), 2, 0, 3, 1, 4)
        q, k, v = qkv[0], qkv[1], qkv[2]
        pq = torch.einsum("bhsd,hdf->bhsf", q, w_phi)
        pk = torch.einsum("bhsd,hdf->bhsf", k, w_phi)
        phi_q = torch.concatenate([_softmax(pq, axis=-1), _softmax(-pq, axis=-1)], axis=-1)
        phi_k = torch.concatenate([_softmax(pk, axis=-1), _softmax(-pk, axis=-1)], axis=-1)
        kv = torch.einsum("bhsf,bhsd->bhfd", phi_k, v)
        z  = torch.einsum("bhsf->bhf", phi_k)
        num = torch.einsum("bhqf,bhfd->bhqd", phi_q, kv)
        den = torch.einsum("bhqf,bhf->bhq", phi_q, z)[..., None] + 1e-6
        o = num / den
        return (lambda x, *d: x.permute(*d))(o, 0, 2, 1, 3).reshape(B, S, D) @ wo

    def _B_ref(x, wqkv, wo):
        B, S, D = x.shape
        H = 32; Dh = D // H
        W, dil = 8, 2
        qkv = (lambda x, *d: x.permute(*d))((x @ wqkv).reshape(B, S, 3, H, Dh), 2, 0, 3, 1, 4)
        q, k, v = qkv[0], qkv[1], qkv[2]
        scale = Dh ** -0.5
        pos = torch.arange(S)
        off = torch.arange(W) * dil
        idx = pos[:, None] - off[None, :]
        mask = idx >= 0
        idx_c = torch.where(mask, idx, 0).reshape(-1)
        kg = k[:, :, idx_c, :].reshape(B, H, S, W, Dh)
        vg = v[:, :, idx_c, :].reshape(B, H, S, W, Dh)
        logits = torch.einsum("bhsd,bhswd->bhsw", q, kg) * scale
        logits = torch.where(mask[None, None, :, :], logits, -1e9)
        attn = _softmax(logits, axis=-1)
        o = torch.einsum("bhsw,bhswd->bhsd", attn, vg)
        return (lambda x, *d: x.permute(*d))(o, 0, 2, 1, 3).reshape(B, S, D) @ wo

    x = A_x
    g = _sigmoid((x * gate_w).sum(-1, keepdims=True))
    a = _A_ref(x, A_wqkv, A_w_phi, A_wo)
    b = _B_ref(x, B_wqkv, B_wo)
    return g * a + (1 - g) * b
```

```python
import re

REG_RE = re.compile(r'^(-|abs\()?(v|s|a)(?:(\d+)|\[(\d+):(\d+)\])\)?$')
TRANS = ('v_exp_f32', 'v_log_f32', 'v_rcp_f32', 'v_rsq_f32', 'v_sqrt_f32', 'v_sin_f32', 'v_cos_f32')


def regs_of(op):
    op = op.strip()
    if op in ('vcc', 'exec', 'm0', 'scc'):
        return {op}
    if op in ('vcc_lo', 'vcc_hi'):
        return {'vcc'}
    if op in ('exec_lo', 'exec_hi'):
        return {'exec'}
    m = REG_RE.match(op)
    if not m:
        return set()
    k = m.group(2)
    if m.group(3) is not None:
        return {f'{k}{m.group(3)}'}
    return {f'{k}{i}' for i in range(int(m.group(4)), int(m.group(5)) + 1)}


class Ins:
    def __init__(self, text):
        self.text = text
        t = text.split(';')[0].strip()
        parts = t.split(None, 1)
        self.mn = parts[0]
        rest = parts[1] if len(parts) > 1 else ''
        ops = [o.strip() for o in rest.split(',')] if rest else []
        clean = []
        for o in ops:
            tok = o.split()
            if not tok:
                continue
            clean.append(tok[0])
            if len(tok) > 1:
                break
        self.ops = clean
        self.mods = rest
        mn = self.mn
        R = [regs_of(o) for o in clean]
        allr = set().union(*R) if R else set()
        self.kind = 'other'
        self.rd, self.wr = set(), set()
        self.passes = 0
        self.states = 1
        if mn.startswith('v_mfma'):
            self.kind = 'mfma'
            self.D, self.A, self.B, self.C = R[0], R[1], R[2], R[3]
            self.wr = R[0]; self.rd = R[1] | R[2] | R[3]
            self.passes = 8 if '32x32' in mn else 4
        elif mn.startswith('v_'):
            self.kind = 'valu'
            if mn.startswith('v_permlane'):
                self.wr = allr; self.rd = allr
            elif mn.startswith(('v_fmac', 'v_dot2c', 'v_pk_fmac')):
                self.wr = R[0]; self.rd = allr
            elif mn.startswith(('v_add_co', 'v_sub_co', 'v_addc_co')):
                self.wr = R[0] | R[1]; self.rd = set().union(*R[2:])
            elif mn == 'v_nop':
                pass
            else:
                self.wr = R[0]; self.rd = set().union(*R[1:]) if len(R) > 1 else set()
            if mn.startswith('v_cmpx'):
                self.wr = self.wr | {'exec'}
            if '_dpp' in mn:
                self.rd = self.rd | R[0]
        elif mn.startswith('ds_'):
            self.kind = 'lds'
            if mn.startswith('ds_read'):
                self.wr = R[0]; self.rd = set().union(*R[1:])
            else:
                self.rd = allr
        elif mn.startswith(('buffer_', 'global_')):
            self.kind = 'vmem'
            self.is_lds = ' lds' in (' ' + rest + ' ').replace(',', ' ') and re.search(r'\blds\b', rest) is not None
            if 'load' in mn and not self.is_lds:
                self.wr = R[0]; self.rd = set().union(*R[1:])
            else:
                self.rd = set(allr)
                if self.is_lds:
                    self.rd.add('m0')
            self.wide_data = set()
            if 'store' in mn and ('x4' in mn or 'x3' in mn):
                self.wide_data = R[0] if mn.startswith('buffer_') else R[1]
        elif mn.startswith('s_'):
            self.kind = 'salu'
            if mn == 's_nop':
                self.states = int(clean[0], 0) + 1
            elif mn.startswith(('s_cmp', 's_branch', 's_cbranch', 's_waitcnt', 's_barrier', 's_endpgm', 's_sleep', 's_setprio', 's_bitcmp')):
                self.rd = allr
            elif mn.startswith(('s_load', 's_memrealtime', 's_memtime', 's_atomic')):
                self.kind = 'smem'
                self.wr = R[0]; self.rd = set().union(*R[1:]) if len(R) > 1 else set()
            else:
                self.wr = R[0]; self.rd = set().union(*R[1:]) if len(R) > 1 else set()
                if 'saveexec' in mn:
                    self.wr = self.wr | {'exec'}

    def is_trans(self):
        return self.mn.startswith(TRANS)


def need_states(p, c):
    n = 0
    vw = {r for r in p.wr if r[0] in 'va' and r != 'vcc'}
    sw = {r for r in p.wr if r not in vw}
    if p.kind == 'valu':
        if c.kind == 'mfma' and vw & c.rd:
            n = max(n, 2)
        if c.kind == 'mfma' and 'exec' in p.wr:
            n = max(n, 4)
        if c.kind == 'valu':
            if p.is_trans() and not c.is_trans() and vw & c.rd:
                n = max(n, 1)
            if c.mn.startswith('v_permlane') and vw & c.rd:
                n = max(n, 2)
            if c.mn.startswith(('v_readlane', 'v_readfirstlane')) and vw & c.rd:
                n = max(n, 1)
            if '_dpp' in c.mn and vw & c.rd:
                n = max(n, 2)
            if sw & c.rd:
                n = max(n, 4 if c.mn.startswith(('v_readlane', 'v_writelane')) else 2)
        if c.kind in ('vmem', 'lds') and p.is_trans() and vw & c.rd:
            n = max(n, 1)
        if c.kind == 'vmem' and sw & c.rd:
            n = max(n, 5)
        if c.kind in ('salu', 'smem') and sw & c.rd:
            n = max(n, 1)
    if p.kind == 'mfma':
        full = 8 if p.passes == 4 else 12
        if c.kind == 'mfma':
            if p.D & (c.A | c.B):
                n = max(n, full)
            if p.D & c.C:
                if not (p.D == c.C and p.mn == c.mn):
                    n = max(n, full - 2)
            if p.D & c.D and not (p.D == c.D and p.D == c.C and p.mn == c.mn):
                n = max(n, full - 2)
        elif c.kind in ('valu', 'vmem', 'lds'):
            if p.D & (c.rd | c.wr):
                n = max(n, full)
            if c.kind == 'valu' and p.C & c.wr:
                n = max(n, 3 if p.passes == 4 else 7)
            if c.kind in ('vmem', 'lds') and p.C & c.wr:
                n = max(n, 3 if p.passes == 4 else 7)
    if p.kind == 'salu' and 'm0' in p.wr and c.kind == 'vmem' and 'm0' in c.rd:
        n = max(n, 1)
    if p.kind == 'vmem' and p.wide_data & c.wr:
        n = max(n, 2)
    return n


class Asm:
    def __init__(self):
        self.lines = []
        self.hist = []
        self.vmq = []
        self.lq = []
        self.nops = 0

    def raw(self, s):
        self.lines.append(s)

    def label(self, name):
        self.lines.append(name + ':')
        for i, p in enumerate(self.hist):
            if p.mn.startswith(('s_cbranch', 's_branch')) and p.ops and p.ops[0] == name:
                for q in self.hist[i + 1:]:
                    q.states = 0
                break

    def I(self, text, tag=None, cond=False):
        for t in text.split('\n'):
            t = t.strip()
            if t:
                self._one(t, tag, cond)

    def _one(self, text, tag, cond):
        c = Ins(text)
        dist = 0
        pad = 0
        for p in reversed(self.hist):
            pad = max(pad, need_states(p, c) - dist)
            dist += p.states
            if dist >= 20:
                break
        while pad > 0:
            k = min(pad, 16)
            n = Ins(f's_nop {k-1}')
            self.hist.append(n); self.lines.append('    ' + n.text); self.nops += 1
            pad -= k
        self.hist.append(c)
        self.hist = self.hist[-400:]
        self.lines.append('    ' + text)
        if c.kind == 'vmem':
            self.vmq.append((tag, cond))
        elif c.kind == 'lds':
            self.lq.append((tag, cond))

    @staticmethod
    def _count(q, tag):
        idx = None
        for i, (t, _) in enumerate(q):
            if t == tag:
                idx = i
        if idx is None:
            return None, None
        ccond = q[idx][1]
        n = sum(1 for (t, cd) in q[idx + 1:] if (not cd) or (ccond and cd == ccond))
        return idx, n

    def wait(self, vm=None, lds=None, keep=False):
        parts = []
        if vm is not None:
            if vm == 'all':
                parts.append('vmcnt(0)')
                if not keep: self.vmq = []
            else:
                idx, n = self._count(self.vmq, vm)
                if idx is not None:
                    parts.append(f'vmcnt({min(n, 63)})')
                    if not keep: self.vmq = self.vmq[idx + 1:]
        if lds is not None:
            if lds == 'all':
                parts.append('lgkmcnt(0)')
                if not keep: self.lq = []
            else:
                idx, n = self._count(self.lq, lds)
                if idx is not None:
                    parts.append(f'lgkmcnt({min(n, 15)})')
                    if not keep: self.lq = self.lq[idx + 1:]
        if parts:
            self.I('s_waitcnt ' + ' '.join(parts))

    def fence(self, n=12):
        self.I(f's_nop {n-1}')

    def text(self):
        return '\n'.join(self.lines) + '\n'


def vr(b, n=1):
    return f'v{b}' if n == 1 else f'v[{b}:{b+n-1}]'


def sr(b, n=1):
    return f's{b}' if n == 1 else f's[{b}:{b+n-1}]'
```

```python
import sys, argparse, json
sys.path.insert(0, 'gen')
from asmlib import Asm, vr, sr

NAME = 'gated_mix__linear_kernel_hedgehog__sliding_local_dilated__prompt'
ap = argparse.ArgumentParser()
ap.add_argument('-o', default=f'cdna_kernels/{NAME}.s')
ap.add_argument('--stamps', type=int, default=0)
ap.add_argument('--rot', type=int, default=1)
ap.add_argument('--opad', type=int, default=9216)
ap.add_argument('--lag', type=int, default=3)
ap.add_argument('--flagstep', type=int, default=12)
ap.add_argument('--pk', type=int, default=1)
ap.add_argument('--spin', type=int, default=1 << 20)
ap.add_argument('--codepf', type=int, default=1)
ap.add_argument('--budget', type=int, default=24)
ap.add_argument('--ni', type=int, default=3)
ap.add_argument('--delta', type=int, default=8)
ap.add_argument('--vgap', type=int, default=2)
ap.add_argument('--wgap', type=int, default=2)
ap.add_argument('--pollstep', type=int, default=27)
ap.add_argument('--outsc', default='sc1')
ap.add_argument('--vstart', type=int, default=25)
ap.add_argument('--b1', type=int, default=2)
ap.add_argument('--b2hi', type=float, default=0.3)
ap.add_argument('--b3lo', type=float, default=0.5)
ap.add_argument('--b5lo', type=int, default=12)
ap.add_argument('--wo1', type=int, default=5)
ap.add_argument('--prio', type=int, default=1)
ap.add_argument('--abar', default='0:1,8:4,20:7')
ap.add_argument('--ahi', default='0.1,0.55')
ap.add_argument('--vstep', type=int, default=4)
ap.add_argument('--s1', type=int, default=0)
ap.add_argument('--hside', type=int, default=2)
ap.add_argument('--b5hi', type=int, default=24)
ap.add_argument('--retry', type=int, default=1024)
ap.add_argument('--warm', type=int, default=1)
ap.add_argument('--swap16', type=int, default=1)
ap.add_argument('--lagv', type=int, default=4)
ap.add_argument('--bpat', default='222200')
ap.add_argument('--bwait', type=int, default=2)
ap.add_argument('--fstage', type=int, default=0)
ap.add_argument('--kside', type=int, default=4)
ap.add_argument('--npre', type=int, default=10)
ap.add_argument('--early', type=int, default=2)
ap.add_argument('--nohalo', type=int, default=0)
ap.add_argument('--qgap', type=int, default=3)
ap.add_argument('--logap', type=int, default=2)
ap.add_argument('--fkpos', type=int, default=6)
ap.add_argument('--vq0', type=int, default=0)
ap.add_argument('--touch', type=int, default=-1)
ap.add_argument('--hearly', type=int, default=2)
ap.add_argument('--nfr', type=int, default=8)
ap.add_argument('--kvpoll', type=float, default=0.45)
ap.add_argument('--psleep', type=int, default=0)
ap.add_argument('--nfa', type=int, default=8)
ap.add_argument('--tch', default='XABo')
ap.add_argument('--lowo', type=int, default=3)
ap.add_argument('--nib', type=int, default=2)
ap.add_argument('--top', default='n')
ap.add_argument('--cearly', type=int, default=1)
ap.add_argument('--cslots', type=int, default=2)
ap.add_argument('--ospec', type=int, default=1)
ap.add_argument('--nmid', type=int, default=12)
ap.add_argument('--npre1', type=int, default=4)
ap.add_argument('--mid0', type=int, default=4)
ap.add_argument('--s4c', type=float, default=0.5)
ap.add_argument('--hq0', type=int, default=32)
ap.add_argument('--nl1', type=int, default=4)
ap.add_argument('--lpre', type=int, default=1)
ap.add_argument('--pend', type=float, default=0.8)
ap.add_argument('--sv', type=int, default=44)
ap.add_argument('--qown', type=int, default=2)
ap.add_argument('--nlb', type=int, default=16)
ap.add_argument('--we0', type=int, default=2)
ap.add_argument('--fat', type=float, default=0.3)
ap.add_argument('--npoll', type=int, default=2)
ap.add_argument('--cprio', type=int, default=0)
ap.add_argument('--bspec', type=int, default=1)
ap.add_argument('--bfill', type=int, default=7)
ap.add_argument('--nfb', type=int, default=32)
ap.add_argument('--aprio', type=int, default=0)
ap.add_argument('--q0', type=int, default=0)
ap.add_argument('--kprio', type=int, default=3)
ap.add_argument('--bdelay', type=int, default=1)
ap.add_argument('--l2wo', type=int, default=-1)
ap.add_argument('--nh', type=int, default=2)
ap.add_argument('--qpr', type=int, default=0)
ap.add_argument('--zip', type=int, default=1)
ap.add_argument('--map', type=int, default=0)
ap.add_argument('--fake16', default='')
ap.add_argument('--bsplit', type=int, default=1)
ap.add_argument('--bprio', type=int, default=1)
ap.add_argument('--vbar2', type=float, default=0.7)
ap.add_argument('--hb', type=int, default=3)
ap.add_argument('--chalo', type=int, default=1)
ap.add_argument('--kmask', type=int, default=0)
ap.add_argument('--sq', type=int, default=-1)
ap.add_argument('--so', type=int, default=-1)
ap.add_argument('--gerl', type=int, default=1)
ap.add_argument('--tlb', type=int, default=1)
ap.add_argument('--bfrac', type=float, default=0.7)
ap.add_argument('--bx1', type=int, default=0)
ap.add_argument('--afrac', type=float, default=0.6)
ap.add_argument('--hsb', type=int, default=16)
ap.add_argument('--hlate', type=int, default=1)
ap.add_argument('--nt', type=int, default=0)
ap.add_argument('--ntm', default='nt')
ap.add_argument('--xr', type=int, default=0)
ap.add_argument('--fwho', default='h')
ap.add_argument('--fst', type=int, default=7)
ap.add_argument('--vsw', type=int, default=1)
ap.add_argument('--nl1x', type=int, default=8)
ap.add_argument('--nf1x', type=int, default=28)
ap.add_argument('--xlate', type=int, default=1)
ap.add_argument('--bs1', type=int, default=0)
ap.add_argument('--bsw', type=int, default=1)
ap.add_argument('--blate', type=int, default=0)
ap.add_argument('--tw', default='')
ap.add_argument('--force', default='')
ap.add_argument('--osig', type=int, default=4)
ap.add_argument('--ksig', type=int, default=5)
ap.add_argument('--bsig', type=int, default=2)
ap.add_argument('--npb', type=int, default=10)
ap.add_argument('--orot', type=int, default=0)
ap.add_argument('--krot', type=int, default=1)
ap.add_argument('--align', type=int, default=0)
ap.add_argument('--lg', type=int, default=4)
ap.add_argument('--hp1', type=int, default=0)
ap.add_argument('--hs2', type=float, default=0.0)
ap.add_argument('--qmax', type=int, default=5)
ap.add_argument('--wec', type=int, default=0)
ap.add_argument('--wel', type=int, default=2)
ap.add_argument('--wem', type=int, default=0)
ap.add_argument('--bbar', type=int, default=16)
ap.add_argument('--blw', type=int, default=6)
ap.add_argument('--bha', type=int, default=3)
ap.add_argument('--vlate', type=int, default=1)
ap.add_argument('--lq', type=int, default=4)
ap.add_argument('--xw0', type=int, default=2)
ap.add_argument('--xb', type=int, default=14)
ap.add_argument('--xf', type=int, default=22)
ap.add_argument('--s2e', type=int, default=0)
ap.add_argument('--nl0', type=int, default=2)
ap.add_argument('--nf0', type=int, default=12)
ap.add_argument('--svpos', type=int, default=0)
ap.add_argument('--pbar', type=int, default=5)
ap.add_argument('--hmove', type=int, default=0)
ap.add_argument('--wsplit', type=int, default=1)
ap.add_argument('--nown', type=int, default=1)
ap.add_argument('--dk', type=int, default=2)
ap.add_argument('--vafter', default='222')
ap.add_argument('--s1v', type=int, default=1)
ap.add_argument('--s3', type=int, default=20)
ap.add_argument('--s3h', type=float, default=0.4)
ap.add_argument('--s4', type=int, default=10)
ap.add_argument('--lk', type=int, default=2)
ap.add_argument('--cside', type=int, default=2)
ap.add_argument('--wprio', type=int, default=0)
ap.add_argument('--qafter', default='22')
ap.add_argument('--qsplit', type=int, default=0)
ap.add_argument('--apat', default='3330')
ap.add_argument('--kpk', type=int, default=1)
ap.add_argument('--hprio', type=int, default=0)
ap.add_argument('--hburst', type=int, default=0)
ap.add_argument('--vburst', type=int, default=0)
ap.add_argument('--pa', type=int, default=8)
ap.add_argument('--wotail', type=int, default=0)
ap.add_argument('--ctlag', type=int, default=0)
ap.add_argument('--poll0', type=int, default=21)
ap.add_argument('--pad', type=int, default=0)
ap.add_argument('--padat', type=int, default=13)
ap.add_argument('--vprio', type=int, default=0)
ap.add_argument('--dbg', default='')
ap.add_argument('--order', type=int, default=1)
ap.add_argument('--vbar', type=int, default=0)
args = ap.parse_args()

OSTR = 32768 + args.opad
OA = 0
OB = 64 * OSTR
KSTR = 4608
KVP = 128 * OSTR
GP = KVP + 128 * KSTR
FK = GP + 128 * 512
FA = FK + 32 * 128
FB = FA + 128 * 128
WS_USED = FB + 128 * 128
STAMPS = 16 << 20
WS_REC = 32 << 20
OOB = 0x7FFFFFF0
assert WS_USED < STAMPS and FK % 128 == 0

CLK = 's_memtime' if args.stamps == 2 else 's_memrealtime'
LOG2E = 0x3FB8AA3B
NLOG2E = 0xBFB8AA3B
BLK = 8192
NST = 14

S_X, S_W, S_WOA, S_WOB, S_WS, S_OUT, S_MISC, S_DBG = 4, 8, 12, 16, 20, 24, 28, 32
STAMP_S = 36
sK, sW = 64, 72
sLX, sLW, sT1, sT2 = 80, 81, 82, 83
sL2E = 84
sC, sG, sWv, sRB, sHP, sROT, sT0, sT3 = 86, 87, 88, 89, 90, 91, 92, 93
sM0 = 94
sD, sSPIN, sOFF, sFL, sGS, sHL = 96, 97, 98, 99, 100, 101

a = Asm()
cap = [None]
KEEP = ('s_cselect', 's_cbranch', 'vcc', 'exec', 's_subb', 'm0', 'v_permlane')


def I(text, tag=None, cond=False):
    if tag and tag.startswith('st') and text.endswith(' lds') and int(tag[2:]) < args.nt:
        text = text[:-4] + f' {args.ntm} lds'
    if cap[0] is None:
        a.I(text, tag, cond)
        return
    if any(k in text for k in KEEP):
        cap[0].append((text, tag))
    else:
        for t in text.split('\n'):
            if t.strip():
                cap[0].append((t.strip(), tag))


def capture(fn):
    cap[0] = []
    fn()
    r, cap[0] = cap[0], None
    return r


def cost(text):
    c = 0
    for t in text.split('\n'):
        t = t.strip()
        if t.startswith('v_mfma'):
            c += 8
        elif t.startswith(('v_exp', 'v_rcp')):
            c += 8
        elif t.startswith('v_'):
            c += 4
        elif t:
            c += 2
    return c


def emit_side(lst, budget):
    while lst:
        t, tag = lst[0]
        if t == 'PAUSE':
            lst.pop(0)
            return
        c = cost(t)
        if c > budget:
            return
        budget -= c
        lst.pop(0)
        a.I(t, tag)


def emit_slots(lst, n):
    while lst:
        t, tag = lst[0]
        c = len([x for x in t.split('\n') if x.strip()]) + (t.count('v_exp') + t.count('v_rcp') + t.count('v_mfma')) + 2 * t.count('v_cndmask')
        if t.startswith('ds_write'):
            c = max(n, 1)
        if c > n and n < 2:
            return
        n -= c
        lst.pop(0)
        a.I(t, tag)
        if n <= 0:
            return


def flush(lst):
    while lst:
        t, tag = lst.pop(0)
        if t != 'PAUSE':
            a.I(t, tag)


nlabel = [0]


def newlabel(p):
    nlabel[0] += 1
    return f'L_{p}{nlabel[0]}'


def stamp(k, grp=''):
    if args.pad and grp == '':
        if k == 0:
            I('s_memrealtime s[36:37]')
        if k == args.padat:
            lb = newlabel('pad')
            a.label(lb)
            I(f's_memrealtime s[38:39]\ns_waitcnt lgkmcnt(0)\ns_sub_u32 s38, s38, s36\ns_cmp_lt_u32 s38, {args.pad}\ns_cbranch_scc1 {lb}')
        return
    if args.dbg != grp and 5 <= k <= 12:
        return
    if args.stamps:
        I(f'{CLK} s[{STAMP_S+2*k}:{STAMP_S+2*k+1}]')


def win(addr):
    return addr >> 16, addr & 0xFFFF


def mfma32(d, A, B, c):
    I(f'v_mfma_f32_32x32x16_bf16 {vr(d,16)}, {vr(A,4)}, {vr(B,4)}, {"0" if c is None else vr(c,16)}')


def mfma16(d, A, B, c):
    I(f'v_mfma_f32_16x16x32_bf16 {vr(d,4)}, {vr(A,4)}, {vr(B,4)}, {"0" if c is None else vr(c,4)}')


def barrier(vm=None, lds=None):
    a.wait(vm=vm, lds=lds)
    I('s_barrier')


def spin(load, check, lds=False):
    top, out = newlabel('spin'), newlabel('spun')
    I(f's_mov_b32 s{sSPIN}, 0')
    a.label(top)
    load()
    if lds:
        a.wait(lds='all')
    else:
        a.wait(vm='all')
    check()
    I(f's_cbranch_vccz {out}')
    I(f's_add_u32 s{sSPIN}, s{sSPIN}, 1\ns_cmp_lt_u32 s{sSPIN}, {args.spin}\ns_cbranch_scc1 {top}')
    a.label(out)


def softmax16(P, T, pk):
    softmax_exp(P, T, pk)
    softmax_sum(P, T, pk)
    softmax_norm(P, T, pk)


def softmax_exp(P, T, pk):
    m0, m1, nm, T0, T1 = T, T + 1, T + 2, T + 4, T + 6
    I(f'v_max3_f32 v{m0}, v{P}, v{P+1}, v{P+2}')
    I(f'v_max3_f32 v{m1}, v{P+3}, v{P+4}, v{P+5}')
    for i, k in enumerate((6, 8, 10, 12, 14)):
        m = m0 if i % 2 == 0 else m1
        I(f'v_max3_f32 v{m}, v{m}, v{P+k}, v{P+k+1}')
    I(f'v_max_f32 v{m0}, v{m0}, v{m1}')
    I(f'v_mul_f32 v{nm}, {NLOG2E:#x}, v{m0}')
    if pk:
        for i in range(8):
            I(f'v_pk_fma_f32 {vr(P+2*i,2)}, {vr(P+2*i,2)}, {sr(sL2E,2)}, {vr(nm,2)} op_sel_hi:[1,0,0]')
            if i >= 1:
                I(f'v_exp_f32 v{P+2*i-2}, v{P+2*i-2}\nv_exp_f32 v{P+2*i-1}, v{P+2*i-1}')
        I(f'v_exp_f32 v{P+14}, v{P+14}\nv_exp_f32 v{P+15}, v{P+15}')
    else:
        for i in range(16):
            I(f'v_fmamk_f32 v{P+i}, v{P+i}, {LOG2E:#x}, v{nm}')
            if i >= 1:
                I(f'v_exp_f32 v{P+i-1}, v{P+i-1}')
        I(f'v_exp_f32 v{P+15}, v{P+15}')


def softmax_sum(P, T, pk, inv=None):
    nm, T0, T1 = T + 2 if inv is None else inv, T + 4, T + 6
    if pk:
        I(f'v_pk_add_f32 {vr(T0,2)}, {vr(P,2)}, {vr(P+2,2)}')
        I(f'v_pk_add_f32 {vr(T1,2)}, {vr(P+4,2)}, {vr(P+6,2)}')
        for i, k in enumerate((8, 10, 12, 14)):
            t = T0 if i % 2 == 0 else T1
            I(f'v_pk_add_f32 {vr(t,2)}, {vr(t,2)}, {vr(P+k,2)}')
        I(f'v_pk_add_f32 {vr(T0,2)}, {vr(T0,2)}, {vr(T1,2)}')
        I(f'v_add_f32 v{T0}, v{T0}, v{T0+1}')
    else:
        for j in range(4):
            I(f'v_add_f32 v{T0+j}, v{P+j}, v{P+4+j}')
        for k in (8, 12):
            for j in range(4):
                I(f'v_add_f32 v{T0+j}, v{T0+j}, v{P+k+j}')
        I(f'v_add_f32 v{T0}, v{T0}, v{T0+1}\nv_add_f32 v{T0+2}, v{T0+2}, v{T0+3}\nv_add_f32 v{T0}, v{T0}, v{T0+2}')
    I(f'v_rcp_f32 v{nm}, v{T0}')


def softmax_norm(P, T, pk, inv=None, mid=None):
    nm = T + 2 if inv is None else inv
    for i in range(8):
        if i == 6 and mid:
            mid()
        if pk:
            I(f'v_pk_mul_f32 {vr(P+2*i,2)}, {vr(P+2*i,2)}, {vr(nm,2)} op_sel_hi:[1,0]')
        else:
            I(f'v_mul_f32 v{P+2*i}, v{P+2*i}, v{nm}\nv_mul_f32 v{P+2*i+1}, v{P+2*i+1}, v{nm}')
        if i >= 1:
            I(f'v_cvt_pk_bf16_f32 v{P+i-1}, v{P+2*i-2}, v{P+2*i-1}')
    I(f'v_cvt_pk_bf16_f32 v{P+7}, v{P+14}, v{P+15}')


def tr_lane_addr(dst, t0, t1):
    I(f'v_lshrrev_b32 v{t0}, 5, v1\nv_bfe_u32 v{t1}, v1, 2, 2\nv_lshl_add_u32 v{t0}, v{t0}, 3, v{t1}\nv_lshlrev_b32 v{dst}, 7, v{t0}')
    I(f'v_bfe_u32 v{t0}, v1, 4, 1\nv_and_b32 v{t1}, 1, v1\nv_lshl_or_b32 v{dst}, v{t0}, 5, v{dst}\nv_lshl_or_b32 v{dst}, v{t1}, 4, v{dst}')
    I(f'v_bfe_u32 v{t0}, v1, 1, 1\nv_bfe_u32 v{t1}, v1, 3, 1\nv_lshl_or_b32 v{dst}, v{t0}, 3, v{dst}\nv_lshl_or_b32 v{dst}, v{t1}, 6, v{dst}')


def w16_addr(dst, t):
    I(f'v_lshrrev_b32 v{t}, 4, v1\nv_bfe_u32 v{t+1}, v1, 2, 2\nv_lshl_add_u32 v{t+1}, v{t}, 3, v{t+1}\nv_lshlrev_b32 v{dst}, 7, v{t+1}')
    I(f'v_and_b32 v{t+1}, 3, v1\nv_lshl_or_b32 v{dst}, v{t+1}, 3, v{dst}\nv_bfe_u32 v{t+1}, v1, 3, 1\nv_lshl_or_b32 v{dst}, v{t+1}, 6, v{dst}')
    I(f'v_and_b32 v{t+1}, 1, v{t}\nv_lshl_or_b32 v{dst}, v{t+1}, 5, v{dst}')


def x16_addr(dst, t, sbase):
    I(f'v_and_b32 v{dst}, 15, v1\nv_lshrrev_b32 v{t}, 4, v1\nv_bfe_u32 v{t+1}, v1, 1, 3\nv_lshlrev_b32 v{dst}, 7, v{dst}')
    I(f'v_xor_b32 v{t}, v{t}, v{t+1}\nv_lshl_or_b32 v{dst}, v{t}, 4, v{dst}\nv_add_u32 v{dst}, s{sbase}, v{dst}\nv_xor_b32 v{dst+1}, 64, v{dst}')
    I(f'v_add_u32 v{dst+2}, 0x10000, v{dst}\nv_add_u32 v{dst+3}, 0x10000, v{dst+1}')


def pack16(src, d):
    for i in range(4):
        I(f'v_cvt_pk_bf16_f32 v{d+i}, v{src+2*i}, v{src+2*i+1}')


def swap16(d):
    I(f'v_permlane16_swap_b32 v{d}, v{d+2}')
    I(f'v_permlane16_swap_b32 v{d+1}, v{d+3}')


def x_read_addrs(dst, t0):
    I(f'v_and_b32 v{dst}, 31, v1\nv_lshrrev_b32 v{t0}, 5, v1\nv_bfe_u32 v{t0+1}, v1, 1, 3\nv_lshlrev_b32 v{dst}, 7, v{dst}')
    I(f'v_xor_b32 v{t0}, v{t0}, v{t0+1}\ns_lshl_b32 s{sT0}, s{sRB}, 12\nv_lshl_or_b32 v{dst}, v{t0}, 4, v{dst}\nv_add_u32 v{dst}, s{sT0}, v{dst}')
    for t in range(1, 4):
        I(f'v_xor_b32 v{dst+t}, {32*t}, v{dst}')


def x_read_addrs_hi(dst):
    for t in range(4):
        I(f'v_add_u32 v{dst+4+t}, 0x10000, v{dst+t}')


ref = open('ref_header.txt').read().split('\n')
for l in ref:
    if l.startswith('; @launch'):
        break
    a.raw(l)
a.raw('; @launch grid=(256,1,1) block=(512,1,1) lds=163840')
a.raw('.amdgcn_target "amdgcn-amd-amdhsa--gfx950"')
a.raw('.text')
a.raw(f'.globl {NAME}_kernel')
a.raw('.p2align 8')
a.raw(f'.type {NAME}_kernel,@function')
a.label(f'{NAME}_kernel')

vXO, vWK, vWV, vWQ, vWoO = 2, 4, 5, 6, 31
have_k = set()


def need_k(i):
    if i in have_k:
        return
    have_k.add(i)
    if i == 0:
        I(f's_lshl_b32 s{sK}, s{sROT}, 7')
    else:
        assert i - 1 in have_k
        I(f's_add_u32 s{sK}, s{sK}, 128\ns_and_b32 s{sK}, s{sK}, 1023')
    I(f's_mul_i32 s{sW+i}, s{sK}, 1536')


def prologue():
    I(f'v_bfe_u32 v8, v0, 3, 3\ns_and_b32 s{sC}, s2, 1')
    I(f's_lshl3_add_u32 s{sC}, s{sC}, s{sT1}\nv_and_b32 v9, 7, v0\ns_lshr_b32 s{sT0}, s{sC}, 1\nv_bfe_u32 v10, v0, 4, 2')
    I(f's_lshl_b32 s{sT0}, s{sT0}, 8\nv_lshl_add_u32 v11, v7, 4, v8\ns_and_b32 s{sT2}, s{sC}, 1\nv_xor_b32 v12, v9, v10\ns_or_b32 s{sT0}, s{sT0}, s{sT2}\nv_lshlrev_b32 v11, 11, v11')
    I(f's_lshl_b32 s{sOFF}, s{sT0}, 10\nv_lshl_or_b32 v11, v12, 4, v11\ns_mov_b32 s{S_X+3}, 0x20000\nv_add_u32 v{vXO}, s{sOFF}, v11\ns_lshl_b32 s{S_X+2}, s{S_X+3}, 4')
    I(f's_lshl_b32 s{sLX}, s{sWv}, 11\nv_xor_b32 v{vXO+1}, 64, v{vXO}\ns_lshr_b32 s{sT2}, s2, 6\nv_add_u32 v{vXO+1}, 0x4000, v{vXO+1}')
    if args.rot == 0:
        I(f's_mov_b32 s{sROT}, 0')
    elif args.rot == 1:
        I(f's_lshl1_add_u32 s{sROT}, s{sT2}, s{sT1}\ns_and_b32 s{sROT}, s{sROT}, 7')
    elif args.rot == 2:
        I(f's_xor_b32 s{sROT}, s{sT2}, s{sT1}\ns_and_b32 s{sROT}, s{sROT}, 1\ns_lshl_b32 s{sROT}, s{sROT}, 2')
    elif args.rot == 3:
        I(f's_add_u32 s{sROT}, s{sT2}, s{sT1}\ns_and_b32 s{sROT}, s{sROT}, 3\ns_lshl_b32 s{sROT}, s{sROT}, 1')
    I(f's_lshl_b32 s{sK}, s{sROT}, 7')


def prologue_w(role):
    have_k.clear()
    have_k.add(0)
    if args.xr:
        I(f's_and_b32 s{sG}, s2, 2\nv_lshrrev_b32 v13, 3, v0\ns_lshr_b32 s{sT2}, s2, 6\nv_and_b32 v12, 16, v0\ns_lshl1_add_u32 s{sG}, s{sG}, s{sT2}\ns_mul_i32 s{sW}, s{sK}, 1536')
    else:
        I(f's_and_b32 s{sG}, s2, 6\nv_lshrrev_b32 v13, 3, v0\ns_bfe_u32 s{sT2}, s2, 0x10006\nv_and_b32 v12, 16, v0\ns_or_b32 s{sG}, s{sG}, s{sT2}\ns_mul_i32 s{sW}, s{sK}, 1536')
    I(f's_mov_b64 s[{S_W}:{S_W+1}], s[{(S_WOA, S_WOB)[role]}:{(S_WOA, S_WOB)[role]+1}]')
    I(f'v_lshlrev_b32 v9, 4, v9\ns_lshl_b32 s{sT2}, s{sG}, 7\nv_lshlrev_b32 v12, 2, v12\ns_mov_b32 s{S_W+3}, s{S_X+3}\nv_xor_b32 v12, v12, v9')
    I(f'v_mul_u32_u24 v14, 3072, v13\ns_mov_b32 s{S_W+2}, 1572864\nv_add3_u32 v{vWQ}, v14, v12, s{sT2}\ns_lshl_b32 s{sLW}, s{sWv}, 10\nv_add_u32 v{vWK}, 1024, v{vWQ}')


def prologue_rest(role):
    I(f's_load_dwordx2 s[{S_MISC}:{S_MISC+1}], s[0:1], {16 if role == 0 else 56}')
    I(f's_load_dwordx2 s[{S_WS}:{S_WS+1}], s[0:1], 80')
    I(f's_load_dwordx2 s[{S_WOA}:{S_WOA+1}], s[0:1], 24')
    I(f's_load_dwordx2 s[{S_WOB}:{S_WOB+1}], s[0:1], 48')
    I(f's_load_dwordx2 s[{S_OUT}:{S_OUT+1}], s[0:1], 64')
    I(f's_load_dwordx2 s[{S_DBG}:{S_DBG+1}], s[0:1], 72')
    I(f'v_and_b32 v1, 63, v0\nv_add_u32 v{vWV}, 2048, v{vWQ}\ns_lshl_b32 s{sT2}, s{sT1}, 7\nv_lshl_add_u32 v{vWoO}, v13, 10, v12')
    I(f's_and_b32 s{sRB}, s{sWv}, 1\nv_add_u32 v{vWoO}, s{sT2}, v{vWoO}\ns_lshl_b32 s{sRB}, s{sRB}, 5\nv_xor_b32 v{vWoO}, s{sRB}, v{vWoO}')
    I(f's_and_b32 s{sRB}, s{sWv}, 3\ns_lshr_b32 s{sHP}, s{sWv}, 2')
    if args.stamps:
        for k in range(1, NST):
            if not (args.dbg == 's' and k in (5, 6)):
                I(f's_mov_b32 s{STAMP_S+2*k}, 0')


def srd_tail(base, nrec):
    I(f's_mov_b32 s{base+2}, {nrec}\ns_mov_b32 s{base+3}, 0x20000')


def late_scalars():
    srd_tail(S_WOA, 524288)
    srd_tail(S_WOB, 524288)
    srd_tail(S_OUT, 2097152)
    I(f's_mov_b32 s{sL2E}, {LOG2E:#x}\ns_mov_b32 s{sL2E+1}, {LOG2E:#x}\ns_mov_b32 s{S_DBG+3}, 1')


def dma_x1(i, addr, tag, q):
    need_k(i)
    I(f's_add_u32 m0, s{sLX}, {addr+1024*q}')
    I(f'buffer_load_dwordx4 v{vXO+q}, {sr(S_X,4)}, s{sK} offen lds', tag)


def dma_w(voff, i, addr, tag):
    need_k(i)
    I(f's_add_u32 m0, s{sLW}, {addr}')
    I(f'buffer_load_dwordx4 v{voff}, {sr(S_W,4)}, s{sW+i} offen lds', tag)


WMAP = {'B': [0, 1, 2, 3, 4, 5, 8, 9], 'A': [10, 11, 12, 13, 14, 15, 16, 17]}


def dma_wo(br, g):
    blk = WMAP[br][g]
    I(f's_add_u32 m0, s{sLW}, {blk*BLK}')
    I(f's_mov_b32 s{sD}, {g*65536}')
    I(f'buffer_load_dwordx4 v{vWoO}, {sr(S_WOA if br == "A" else S_WOB,4)}, s{sD} offen lds', 'wo')


sPV, sONE = S_DBG + 2, S_DBG + 3


def sspin(issue, want, first=True):
    top, chk, out = newlabel('sp'), newlabel('sc'), newlabel('so')
    I(f's_mov_b32 s{sSPIN}, 0')
    if not first:
        I(f's_branch {chk}')
    a.label(top)
    issue()
    a.label(chk)
    a.wait(lds='all')
    I(f's_cmp_ge_u32 s{sPV}, {want}\ns_cbranch_scc1 {out}')
    if args.psleep:
        I(f's_sleep {args.psleep}')
    I(f's_add_u32 s{sSPIN}, s{sSPIN}, 1\ns_cmp_lt_u32 s{sSPIN}, {args.spin}\ns_cbranch_scc1 {top}')
    a.label(out)


def ready_issue():
    I(f's_load_dword s{sPV}, s[{S_DBG}:{S_DBG+1}], 0x0')


def ready_check(v):
    ok = newlabel('rdy')
    a.wait(lds='all')
    I(f's_cmp_ge_u32 s{sPV}, 1\ns_cbranch_scc1 {ok}')
    q = list(a.vmq)
    spin(lambda: I(f'v_mov_b32 v{v}, 0\nglobal_load_dword v{v}, v{v}, s[{S_DBG}:{S_DBG+1}] sc1'), lambda: I(f'v_cmp_eq_u32 vcc, 0, v{v}'))
    a.vmq = q
    a.label(ok)


def signal(soff):
    I(f's_atomic_add s{sONE}, s[{S_WS}:{S_WS+1}], s{soff}')


def count_issue(soff):
    I(f's_mov_b32 s{sPV}, 0')
    I(f's_atomic_or s{sPV}, s[{S_WS}:{S_WS+1}], s{soff} glc')


def o_addrs(vos, obase, fbase):
    I(f's_lshl_b32 s{sT0}, s{sC}, 2\ns_add_u32 s{sT0}, s{sT0}, s{sRB}\ns_lshl_b32 s{sT1}, s{sG}, 1\ns_add_u32 s{sT1}, s{sT1}, s{sHP}')
    I(f's_mul_i32 s{sT2}, s{sT0}, {OSTR}\ns_lshl_b32 s{sT3}, s{sT1}, 11\ns_add_u32 s{sT2}, s{sT2}, s{sT3}')
    if obase:
        I(f's_add_u32 s{sT2}, s{sT2}, {obase}')
    I(f'v_lshlrev_b32 v{vos}, 4, v1\nv_add_u32 v{vos}, s{sT2}, v{vos}')
    I(f's_lshl_b32 s{sT0}, s{sT0}, 8\ns_lshr_b32 s{sT2}, s{sG}, 2\ns_lshl_b32 s{sT2}, s{sT2}, 7\ns_add_u32 s{sT0}, s{sT0}, s{sT2}\ns_add_u32 s{sFL}, s{sT0}, {fbase}')


MISC = 19 * BLK
KVS = MISC
WOF, OF, ACC = 128, 32, 96
PREG = dict(pWR=2, pOL=6, pGL=19, pXW=20, pXR=21, pOUT=22, pLF=23)
pWR, pOL, pGL, pXW, pXR, pOUT, pLF = PREG.values()
pF, pG, pT, pE = 26, 16, 8, 27
sPW1, sPW2, sPO, sPG, sPOUT, sPF, sPK, sBR = sK + 1, sK + 2, sK + 3, sK + 4, sK + 5, sK + 6, sK + 7, 3
XA, XB, XL = 6 * BLK, 0, MISC + 5632
XBASE = 0
XGO = 1024


def p2_scalars(br):
    sC2, sRB2, sKH = sM0, sM0 + 1, sPK
    m = WMAP[br]
    I(f's_and_b32 s{sC2}, s2, 7\ns_lshr_b32 s{sT0}, s2, 7\ns_lshl1_add_u32 s{sC2}, s{sC2}, s{sT0}')
    I(f's_bfe_u32 s{sRB2}, s2, 0x10006\ns_bfe_u32 s{sT0}, s{sWv}, 0x10001\ns_lshl1_add_u32 s{sRB2}, s{sRB2}, s{sT0}')
    I(f's_and_b32 s{sKH}, s{sWv}, 1\ns_mov_b32 s{sBR}, {"AB".index(br)}')
    I(f's_mul_i32 s{sPW1}, s{sKH}, {(m[4]-m[0])*BLK}\ns_add_u32 s{sPW1}, s{sPW1}, {m[0]*BLK}\ns_mul_i32 s{sPW2}, s{sKH}, {(m[6]-m[2])*BLK}\ns_add_u32 s{sPW2}, s{sPW2}, {m[2]*BLK}')
    I(f's_mov_b32 s{sT2}, {OA if br == "A" else OB}')
    if args.orot:
        I(f's_mov_b32 s{sT0}, s{sPW1}')
        I(f's_bitcmp1_b32 s2, 3\ns_cselect_b32 s{sPW1}, s{sPW2}, s{sPW1}\ns_cselect_b32 s{sPW2}, s{sT0}, s{sPW2}')
    I(f's_lshl_b32 s{sT0}, s{sC2}, 2\ns_add_u32 s{sT0}, s{sT0}, s{sRB2}\ns_mul_i32 s{sT1}, s{sT0}, {OSTR}\ns_add_u32 s{sT2}, s{sT2}, s{sT1}')
    I(f's_lshl_b32 s{sT1}, s{sKH}, 14\ns_add_u32 s{sPO}, s{sT2}, s{sT1}')
    I(f's_lshl_b32 s{sT0}, s{sT0}, 8\ns_lshl_b32 s{sT1}, s{sBR}, 14\ns_add_u32 s{sT0}, s{sT0}, s{sT1}\ns_lshl_b32 s{sT1}, s{sKH}, 7\ns_add_u32 s{sT0}, s{sT0}, s{sT1}\ns_add_u32 s{sPF}, s{sT0}, {FA}')
    I(f's_lshl_b32 s{sT0}, s{sC2}, 1\ns_add_u32 s{sT0}, s{sT0}, s{sKH}\ns_lshl_b32 s{sT0}, s{sT0}, 11\ns_lshl_b32 s{sT1}, s{sRB2}, 7\ns_add_u32 s{sT0}, s{sT0}, s{sT1}\ns_add_u32 s{sPG}, s{sT0}, {GP}')
    I(f's_lshr_b32 s{sT0}, s{sC2}, 1\ns_lshl_b32 s{sT0}, s{sT0}, 8\ns_and_b32 s{sT1}, s{sC2}, 1\ns_or_b32 s{sT0}, s{sT0}, s{sT1}\ns_lshl_b32 s{sT1}, s{sRB2}, 6\ns_add_u32 s{sT0}, s{sT0}, s{sT1}\ns_lshl_b32 s{sT0}, s{sT0}, 10')
    I(f's_bfe_u32 s{sT1}, s2, 0x30003\ns_lshl_b32 s{sT1}, s{sT1}, 7\ns_add_u32 s{sT0}, s{sT0}, s{sT1}\ns_lshl_b32 s{sT1}, s{sKH}, 15\ns_add_u32 s{sPOUT}, s{sT0}, s{sT1}')
    I(f's_lshl_b32 s{sT1}, s{sKH}, 8\ns_add_u32 s{sPO}, s{sPO}, s{sT1}\ns_sub_u32 s{sPW2}, s{sPW2}, s{sPW1}\ns_lshl_b32 s{sPK}, s{sKH}, 6')
    I(f's_and_b32 s{sT0}, s{sWv}, 3\ns_lshl_b32 s{sM0}, s{sT0}, 12\ns_add_u32 s{sM0}, s{sM0}, {XBASE}\ns_lshl_b32 s{sT0}, s{sT0}, 8\ns_add_u32 s{sM0+1}, s{sT0}, {XL}')


def p2_setup(t, trp, R=PREG):
    pWR, pOL, pGL, pXW, pXR, pOUT, pLF = R.values()
    assert XL % 512 == 0 and OSTR % 512 == 0
    I(f'v_add_u32 v{pWR}, s{sPW1}, v{trp}\nv_xor_b32 v{pWR+1}, 32, v{pWR}\nv_xor_b32 v{pWR+2}, 64, v{pWR}\nv_xor_b32 v{pWR+3}, 0x60, v{pWR}')
    I(f'v_lshlrev_b32 v{t}, 4, v1\nv_add_u32 v{pXR}, s{sM0}, v{t}\nv_xor_b32 v{pXW}, 0x1000, v{pXR}')
    I(f'v_lshlrev_b32 v{t}, 2, v1\nv_add_u32 v{pLF}, s{sM0+1}, v{t}\nv_xor_b32 v{pLF+1}, 0x100, v{pLF}\nv_mov_b32 v{t+1}, -1')
    I(f'ds_write_b32 v{pLF}, v{t+1}', 'side')
    I(f'v_and_b32 v{pOUT}, 15, v1\nv_lshrrev_b32 v{t}, 4, v1\nv_lshlrev_b32 v{pGL}, 9, v{t}')
    I(f'v_lshl_or_b32 v{pOL}, v{pOUT}, 4, v{pGL}\nv_add_u32 v{pOL}, s{sPO}, v{pOL}\nv_xor_b32 v{pOL+1}, 0x100, v{pOL}')
    I(f'v_lshl_or_b32 v{pGL}, v{pOUT}, 2, v{pGL}\nv_or_b32 v{pGL}, s{sPK}, v{pGL}')
    I(f'v_lshlrev_b32 v{pOUT}, 11, v{pOUT}\nv_and_b32 v{t}, 1, v{t}\nv_lshl_or_b32 v{pOUT}, v{t}, 5, v{pOUT}\nv_lshrrev_b32 v{t}, 5, v1\nv_lshl_or_b32 v{pOUT}, v{t}, 4, v{pOUT}')


def wo_half(br, g, q, up, tag):
    blk = WMAP[br][g]
    sg_ = -1 if up else 1
    I(f's_add_u32 m0, s{sLW}, {blk*BLK+sg_*4096*q}' if blk * BLK + sg_ * 4096 * q >= 0 else f's_sub_u32 m0, s{sLW}, 4096')
    if up and q:
        I(f's_mov_b32 s{sD}, {g*65536}')
        I(f'buffer_load_dwordx4 v{vWo2}, {sr(S_WOA if br == "A" else S_WOB,4)}, s{sD} offen lds', tag)
    else:
        I(f's_mov_b32 s{sD}, {g*65536+32768*q}')
        I(f'buffer_load_dwordx4 v{vWoO}, {sr(S_WOA if br == "A" else S_WOB,4)}, s{sD} offen lds', tag)


vWo2 = 29


def page_touch(dst):
    skip = newlabel('notw')
    I(f's_cmp_eq_u32 s{sWv}, 6\ns_cbranch_scc0 {skip}')
    I('s_mov_b64 exec, 1')
    if 'w' in args.tw:
        I(f's_add_u32 s{sT0}, s{sPO}, {32768+4096}\ns_add_u32 s{sT1}, s{sT0}, {OB-OA}\ns_mov_b32 s{sT2}, {WS_USED+8192}')
        for r in (sT0, sT1, sT2):
            I(f'buffer_load_dword v{dst}, off, {sr(S_WS,4)}, s{r}', cond=True)
    if 'o' in args.tw:
        I(f'buffer_load_dword v{dst}, off, {sr(S_OUT,4)}, s{sPOUT}', cond=True)
    if 'p' in args.tw:
        I(f'buffer_load_dword v{dst}, off, {sr(S_WOA,4)}, 0', cond=True)
        I(f'buffer_load_dword v{dst}, off, {sr(S_WOB,4)}, 0', cond=True)
    I('s_mov_b64 exec, -1')
    a.label(skip)


def wo_frags():
    for n in range(8):
        for c in range(4):
            if n == 4:
                I(f'v_add_u32 v{pWR+c}, s{sPW2}, v{pWR+c}')
            for u in range(2):
                I(f'ds_read_b64_tr_b16 {vr(WOF+16*n+4*c+2*u,2)}, v{pWR+c} offset:{(n&3)*4096+u*512}', 'wf')


def checked(v, tag, load, test):
    ok = newlabel('ok')
    a.wait(vm=tag)
    test()
    I(f's_cbranch_vccz {ok}')
    q = list(a.vmq)
    spin(load, test)
    a.vmq = q
    a.label(ok)


vXO2 = 32
ROLE = {0: 's_cmpk_ge_u32 s2, 128', 1: 's_bitcmp1_b32 s2, 2', 2: 's_bitcmp0_b32 s2, 2'}[args.xr]
CLR = {0: 128, 1: 6, 2: 0}[args.xr] + 7 * 256
I(f's_load_dwordx2 s[{S_X}:{S_X+1}], s[0:1], 0')
I(f's_load_dwordx2 s[{S_WOA}:{S_WOA+1}], s[0:1], 8')
I(f's_load_dwordx2 s[{S_WOB}:{S_WOB+1}], s[0:1], 40')
stamp(0)
I(f'v_lshrrev_b32 v7, 6, v0\ns_cmpk_ge_u32 s2, 256\ns_cbranch_scc1 L_end')
I(f'v_readfirstlane_b32 s{sWv}, v7\ns_bfe_u32 s{sT1}, s2, 0x30003')
I(f's_cmp_eq_u32 s{sWv}, 4\ns_cbranch_scc0 L_top')
I(f's_getpc_b64 s[{sM0}:{sM0+1}]\ns_mul_i32 s{sT0}, s{sT1}, 48\nv_and_b32 v254, 63, v0\nv_min_u32 v254, 47, v254\nv_add_lshl_u32 v254, v254, s{sT0}, 7')
I(f'global_load_dword v255, v254, s[{sM0}:{sM0+1}]', cond=True)
a.label('L_top')
prologue()
I(f's_cmp_ge_u32 s{sWv}, 4\ns_cbranch_scc1 L_upper')
I(f's_mov_b32 m0, s{sLX}\ns_waitcnt lgkmcnt(0)')
stamp(5, 's')
I(f'buffer_load_dwordx4 v{vXO}, {sr(S_X,4)}, s{sK} offen lds', 'st0')
I(f's_addk_i32 m0, 0x400\nv_add_u32 v{vXO2}, s{S_X+3}, v{vXO}')
I(f'buffer_load_dwordx4 v{vXO+1}, {sr(S_X,4)}, s{sK} offen lds', 'st0')
I(f's_addk_i32 m0, 0x1c00\nv_add_u32 v{vXO2+1}, s{S_X+3}, v{vXO+1}')
I(f'buffer_load_dwordx4 v{vXO2}, {sr(S_X,4)}, s{sK} offen lds', 'st0')
I(f's_addk_i32 m0, 0x400\n{ROLE}')
I(f'buffer_load_dwordx4 v{vXO2+1}, {sr(S_X,4)}, s{sK} offen lds', 'st0')
I('s_cbranch_scc1 L_roleB\ns_branch L_roleA')
topq = list(a.vmq)
a.label('L_upper')
I(f'{ROLE}\ns_cbranch_scc1 L_bcomp\ns_branch L_acomp')

SLOT = lambda s: (s % 4) * 4 * BLK
QBLK = [16, 17, 18, 6, 7, 13, 14, 15]
PHI, VIM = 0, 4 * BLK
PARK = dict(pWR=240, pOL=244, pGL=246, pXW=247, pXR=248, pOUT=249, pLF=250)
NH = args.nh
NPRE = args.npre


def prio(p):
    if args.prio:
        I(f's_setprio {p}')


def stream(lst, events):
    tot = sum(cost(t) for t, _ in lst)
    events = sorted(events, key=lambda e: e[0])
    done = 0
    for t, tag in lst:
        while events and done >= events[0][0] * tot:
            events.pop(0)[1]()
        a.I(t, tag)
        done += cost(t)
    while events:
        events.pop(0)[1]()


def o_load(k):
    n = k & 7
    I(f'buffer_load_dwordx4 {vr(OF+4*k,4)}, v{pOL+(k<8)}, {sr(S_WS,4)}, s{sW+(n>>1)} offen offset:{(n&1)*2048} sc1', f'o{k}')


def p2_consts():
    if args.orot:
        I(f's_and_b32 s{sW}, s2, 8\ns_lshl_b32 s{sW}, s{sW}, 10')
    else:
        I(f's_mov_b32 s{sW}, 0')
    for q in range(1, 4):
        I(f's_xor_b32 s{sW+q}, s{sW}, {q*4096}')


def gate_loads():
    I(f'v_xor_b32 v{pG+1}, 64, v{pGL}')
    I(f'buffer_load_dword v{pG}, v{pGL}, {sr(S_WS,4)}, s{sPG} offen sc1', 'gl', cond=True)
    I(f'buffer_load_dword v{pG+1}, v{pG+1}, {sr(S_WS,4)}, s{sPG} offen sc1', 'gl', cond=True)


def unpark():
    for nm, r in PREG.items():
        for i in range({'pWR': 4, 'pLF': 2, 'pOL': 2}.get(nm, 1)):
            I(f'v_mov_b32 v{r+i}, v{PARK[nm]+i}')


wof = lambda x: (lambda: dma_wo(*x))
spread = lambda fs, lo=0.0, hi=1.0: [(lo + (hi - lo) * i / len(fs), f) for i, f in enumerate(fs)]
halves = lambda lst, up, tag: [(lambda br, g, q: (lambda: wo_half(br, g, q, up, tag)))(br, g, q) for br, g in lst for q in range(2)]
issued = lambda tag: any(t_ == tag for t_, _ in a.vmq)


def wphi_addr(dst, sg, t):
    I(f'v_lshrrev_b32 v{t}, 5, v1\nv_bfe_u32 v{t+1}, v1, 2, 2\nv_lshl_add_u32 v{t}, v{t}, 3, v{t+1}\nv_lshlrev_b32 v{dst}, 5, v{t}')
    I(f'v_bfe_u32 v{t}, v1, 4, 1\nv_lshl_or_b32 v{dst}, v{t}, 4, v{dst}\nv_bfe_u32 v{t}, v1, 1, 1\nv_lshl_or_b32 v{dst}, v{t}, 3, v{dst}')
    I(f'v_add_u32 v{dst}, {MISC}, v{dst}')
    I(f'v_bfe_u32 v{t}, v1, 2, 1\nv_mul_u32_u24 v{sg}, 0x8000, v{t}\nv_lshl_or_b32 v{sg}, v{sg}, 16, v{sg}')


def phi_addr(dst, hand, t):
    I(f'v_and_b32 v{t}, 31, v1\nv_lshrrev_b32 v{t+1}, 5, v1\nv_lshlrev_b32 v{t+1}, 1, v{t+1}\nv_bfe_u32 v{dst+1}, v1, 1, 2\nv_xor_b32 v{t+1}, v{t+1}, v{dst+1}')
    I(f'v_lshlrev_b32 v{dst}, 6, v{t}\nv_lshl_or_b32 v{dst}, v{t+1}, 4, v{dst}\ns_lshl_b32 s{sT0}, s{sRB}, 11\nv_add_u32 v{dst}, s{sT0}, v{dst}\nv_xor_b32 v{dst+1}, 16, v{dst}')
    I(f'v_lshlrev_b32 v{hand}, 4, v1\nv_add_u32 v{hand}, s{sT0}, v{hand}')


def kv_store_addr(vks, vzs, t):
    I(f's_lshl_b32 s{sT0}, s{sG}, 4\ns_add_u32 s{sT0}, s{sT0}, s{sC}\ns_mul_i32 s{sT0}, s{sT0}, {KSTR}\ns_add_u32 s{sT0}, s{sT0}, {KVP}')
    I(f's_mul_i32 s{sT1}, s{sRB}, 1152\ns_add_u32 s{sT0}, s{sT0}, s{sT1}\nv_lshlrev_b32 v{vks}, 4, v1\nv_add_u32 v{vks}, s{sT0}, v{vks}')
    I(f'v_add_u32 v{vzs}, s{sT0}, v1\nv_and_b32 v{t}, 15, v1\nv_mov_b32 v{t+1}, {OOB:#x}')
    I(f'v_cmp_eq_u32 vcc, 0, v{t}\nv_cndmask_b32 v{vzs}, v{t+1}, v{vzs}, vcc')


vKR, vOS = 28, 0
PQ, KVF, NUM = (64, 80), 32, 96


def join_addr(t):
    I(f'v_and_b32 v{t}, 3, v1\nv_bfe_u32 v{t+1}, v1, 2, 1\nv_lshl_or_b32 v{t}, v{t+1}, 3, v{t}')
    I(f'v_bfe_u32 v{t+1}, v1, 3, 1\nv_lshl_or_b32 v{t}, v{t+1}, 2, v{t}')
    I(f'v_and_b32 v{t+1}, 16, v1\nv_or_b32 v{t}, v{t}, v{t+1}\nv_min_u32 v{t}, 16, v{t}')
    I(f'v_mul_u32_u24 v{vKR}, 80, v{t}\nv_and_b32 v{t+1}, 32, v1\nv_add_u32 v{vKR}, v{vKR}, v{t+1}')
    I(f's_mul_i32 s{sT0}, s{sHP}, 2720\ns_add_u32 s{sT0}, s{sT0}, {KVS}\nv_add_u32 v{vKR}, s{sT0}, v{vKR}')
    o_addrs(vOS, OA, FA)


def lds_write(text):
    if args.wprio:
        cap[0].append((f's_setprio 3\n{text}\ns_setprio 0', 'side'))
    else:
        I(text, 'side')


def phi_k(h, P, T, vpw):
    w1 = lambda e: I(f'ds_write_b128 v{vpw+e}, {vr(P+4*e,4)} offset:{PHI+h*8192}', 'side')
    softmax_exp(P, T, args.kpk)
    softmax_sum(P, T, args.kpk)
    softmax_norm(P, T, args.kpk, mid=lambda: w1(0))
    w1(1)


a.label('L_roleA')
a.vmq = list(topq)

hXO2, hWO2 = vXO2, 10
hPW, hHD, hPR, hVR, hKS, hZS, hWP, hSG, hPL, hZL, hKW, hZW = 148, 150, 151, 153, 154, 155, 156, 157, 25, 27, 28, 29
HP, HW, HK, HT, SEL0, ONES = 32, 96, 112, 128, 136, 144
SEL = 8
PART, ZP, DS_, MARK, hWX = 32, 96, 112, 228, 26
WEARLY = [('B', 6), ('B', 7), ('A', 0), ('A', 1), ('A', 2)]


def a_dx(s, q):
    need_k(s)
    I(f's_add_u32 m0, s{sLX}, {SLOT(s)+1024*(q&1)+8192*(q>>1)}')
    I(f'buffer_load_dwordx4 v{(vXO, vXO+1, hXO2, hXO2+1)[q]}, {sr(S_X,4)}, s{sK} offen lds', f'st{s}')


def a_dw(j, i, addr, q, tag):
    I(f's_add_u32 m0, s{sLW}, {addr+4096*q-1024*j}')
    I(f'buffer_load_dwordx4 v{(vWQ, hWO2)[q]}, {sr(S_W,4)}, s{sW+i} offen offset:{1024*j} lds', tag)


def a_stage(s):
    return [(lambda q: (lambda: a_dx(s, q)))(q) for q in range(4)] + [(lambda j, q: (lambda: a_dw(j, s, SLOT(s) + (1 + j) * BLK, q, f'st{s}')))(j, q) for j in (1, 2) for q in range(2)]


qdma = lambda i: [(lambda q: (lambda: a_dw(0, i, QBLK[i] * BLK, q, f'q{i}')))(q) for q in range(2)]
prologue_w(0)
I(f's_and_b32 s{sT2}, s{sWv}, 1\ns_lshl_b32 s{sT2}, s{sT2}, 5\nv_xor_b32 v{vWQ}, s{sT2}, v{vWQ}')
I(f'v_add_u32 v{hWO2}, {32*3072}, v{vWQ}')
for f in a_stage(0)[4:]:
    f()
stamp(6, 's')
for f in a_stage(1):
    f()
prologue_rest(0)
stamp(7, 's')


def h_setup():
    srd_tail(S_WS, WS_REC)
    late_scalars()
    wphi_addr(hWP, hSG, HT)
    phi_addr(hPW, hHD, HT)
    I(f'v_lshrrev_b32 v{HT}, 5, v1\nv_bfe_u32 v{HT+1}, v1, 2, 3\nv_lshl_add_u32 v{HT}, v{HT}, 4, v{HT+1}')
    I(f'v_bfe_u32 v{HT+1}, v1, 1, 1\nv_bfe_u32 v{HT+2}, v1, 3, 2\nv_xor_b32 v{HT+1}, v{HT+1}, v{HT+2}')
    I(f'v_lshlrev_b32 v{hPR}, 6, v{HT}\nv_lshl_or_b32 v{hPR}, v{HT+1}, 4, v{hPR}')
    I(f'v_and_b32 v{HT+1}, 1, v1\nv_lshl_or_b32 v{hPR}, v{HT+1}, 3, v{hPR}')
    I(f's_lshl_b32 s{sT0}, s{sRB}, 13\nv_add_u32 v{hPR}, s{sT0}, v{hPR}\nv_xor_b32 v{hPR+1}, 32, v{hPR}')
    I(f'v_bfe_u32 v{HT}, v1, 2, 3\nv_lshlrev_b32 v{hVR}, 6, v{HT}\nv_and_b32 v{HT+1}, 3, v1\nv_xor_b32 v{HT+1}, v{HT+1}, v{HT+2}\nv_lshl_or_b32 v{hVR}, v{HT+1}, 4, v{hVR}')
    I(f'v_lshrrev_b32 v{HT+1}, 5, v1\nv_lshl_or_b32 v{hVR}, v{HT+1}, 3, v{hVR}')
    I(f's_lshl_b32 s{sT0}, s{sRB}, 12\ns_add_u32 s{sT0}, s{sT0}, {VIM}\nv_add_u32 v{hVR}, s{sT0}, v{hVR}')
    kv_store_addr(hKS, hZS, HT)
    I(f's_lshl_b32 s{sT1}, s{sG}, 2\ns_add_u32 s{sT0}, s{sT1}, s{sRB}\ns_lshl_b32 s{sT0}, s{sT0}, 7\ns_add_u32 s{sHL}, s{sT0}, {FK}\ns_add_u32 s{sOFF}, s{sHL}, 64')
    I(f's_mul_i32 s{sT0}, s{sG}, {16*KSTR}\ns_mul_i32 s{sT1}, s{sRB}, 1152\ns_add_u32 s{sT0}, s{sT0}, s{sT1}\ns_add_u32 s{sT0}, s{sT0}, {KVP}')
    I(f'v_lshrrev_b32 v{HT}, 4, v1\nv_and_b32 v{HT+1}, 15, v1\nv_mul_u32_u24 v{hZL}, {KSTR}, v{HT}\nv_add_u32 v{hZL}, s{sT0}, v{hZL}')
    I(f'v_lshl_add_u32 v{hPL}, v{HT+1}, 4, v{hZL}\nv_and_b32 v{HT+3}, 3, v1\nv_lshl_add_u32 v{hZL}, v{HT+3}, 4, v{hZL}')
    I(f's_mul_i32 s{sT0}, s{sRB}, 1360\ns_add_u32 s{sT0}, s{sT0}, {KVS}\nv_bfe_u32 v{HT+2}, v1, 4, 1\nv_lshlrev_b32 v{hZW}, 5, v{HT+2}\nv_add_u32 v{hZW}, s{sT0}, v{hZW}')
    I(f'v_mul_u32_u24 v{hKW}, 80, v{HT+1}\nv_add_u32 v{hKW}, v{hKW}, v{hZW}\nv_lshrrev_b32 v{HT+2}, 5, v1\nv_lshl_add_u32 v{hKW}, v{HT+2}, 3, v{hKW}')
    I(f'v_lshl_add_u32 v{hZW}, v{HT+3}, 3, v{hZW}')
    I(f'v_and_b32 v{HT+2}, 1, v1\nv_lshlrev_b32 v{HT+2}, 4, v{HT+2}\nv_mov_b32 v{HT+3}, 0x3f80\nv_lshlrev_b32 v{HT+2}, v{HT+2}, v{HT+3}\nv_bfe_u32 v{HT+3}, v1, 1, 3')
    for i in range(0, 8, 2):
        I(f'v_cmp_eq_u32 vcc, {i}, v{HT+3}\nv_cmp_eq_u32 s[{sT0}:{sT0+1}], {i+1}, v{HT+3}\nv_cndmask_b32 v{SEL0+i}, 0, v{HT+2}, vcc\nv_cndmask_b32 v{SEL0+i+1}, 0, v{HT+2}, s[{sT0}:{sT0+1}]')
    for i in range(4):
        I(f'v_mov_b32 v{ONES+i}, 0x3f803f80\nv_mov_b32 v{MARK+i}, -1')
    o_addrs(vOS, OA, FA)
    I(f'v_subrev_u32 v{hWX}, s{sLX}, v{vWoO}\nv_subrev_u32 v{hWX}, s{sLX}, v{hWX}\nv_subrev_u32 v{hWX}, s{sLX}, v{hWX}\nv_subrev_u32 v{hWX}, s{sLX}, v{hWX}')
    I(f's_and_b32 s{sT0}, s{sWv}, 1\ns_lshl_b32 s{sT0}, s{sT0}, 5\nv_xor_b32 v{hWX}, s{sT0}, v{hWX}\nv_xor_b32 v30, 32, v{hWX}')
    p2_scalars('B')
    w16_addr(HT + 2, HT)
    p2_setup(HT, HT + 2, PARK)


def dma_wphi():
    srd_tail(S_MISC, 16384)
    I(f's_lshl_b32 s{sD}, s{sWv}, 9\ns_add_u32 m0, s{sD}, {MISC}')
    I(f's_lshl_b32 s{sSPIN}, s{sG}, 11\ns_add_u32 s{sD}, s{sD}, s{sSPIN}\nv_lshlrev_b32 v7, 4, v1\ns_mov_b32 exec_hi, 0')
    I(f'buffer_load_dwordx4 v7, {sr(S_MISC,4)}, s{sD} offen lds', 'wphi')
    I('s_mov_b64 exec, -1')


I('s_waitcnt lgkmcnt(0)')
dma_wphi()
hs = capture(h_setup)
hs2 = []
if args.hs2:
    cutp = [i for i, (t_, _) in enumerate(hs) if t_.startswith(f's_and_b32 s{sM0}, s2, 7')][0]
    hs, hs2 = hs[:cutp], hs[cutp:]
if args.early == 2:
    kk = int(len(hs) * args.afrac)
    flush(hs[:kk])
    hs = hs[kk:]
for s in range(2, args.dk):
    for f in a_stage(s):
        f()
if args.early == 1:
    flush(hs)
def fills():
    for j in range(2):
        I(f'buffer_store_dwordx4 {vr(MARK,4)}, v{(hKS, hZS)[j]}, {sr(S_WS,4)}, 0 offen offset:{1024*j} sc1', 'fill')
    if args.ospec:
        for h in range(4):
            I(f'buffer_store_dwordx4 {vr(MARK,4)}, v{vOS}, {sr(S_WS,4)}, 0 offen offset:{h*1024} sc1', 'fill')


nq = 0
if args.q0:
    for f in qdma(0):
        f()
    nq = 1
stamp(1)
if args.hp1:
    prio(args.hp1)
for s in range(8):
    barrier(vm=f'st{s}')
    if s:
        stamp(4 + s, 'b')
    if s == 0:
        stamp(2)
    if s + args.dk < 8:
        q = a_stage(s + args.dk)
    else:
        q = []
        for _ in range(int(args.qafter[s + args.dk - 8])):
            assert nq < 3 or (nq < 5 and s >= 6)
            q += qdma(nq)
            nq += 1
    for f in q:
        f()
        if not args.hlate:
            emit_side(hs, args.hsb)
    if args.hlate and s >= 6:
        kk = len(hs) // 3 if s == 6 else len(hs)
        flush(hs[:kk])
        hs = hs[kk:]
    if s == 5:
        if not args.hlate:
            flush(hs)
        for h in range(NH):
            for u in range(2):
                I(f'ds_read_b64_tr_b16 {vr(HW+4*h+2*u,2)}, v{hWP} offset:{h*512+u*128}', 'wph')
    if s == 6:
        a.wait(lds='all')
        for i in range(4 * NH):
            I(f'v_xor_b32 v{HW+i}, v{hSG}, v{HW+i}')
ready_issue()
while nq < args.qmax:
    for f in qdma(nq):
        f()
    nq += 1
we = halves(WEARLY[args.wem:5 - args.wec - args.wel], 0, 'wo')
for f in we[:args.we0]:
    f()
if args.fwho == 'e':
    fills()
ready_check(HT)
stamp(3)
barrier(vm='q1' if args.qpr and NH else None)
stamp(4)
prio(3)
for h in range(NH):
    I(f'ds_read_b128 {vr(HK+4*h,4)}, v{hHD} offset:{PHI+h*8192}', f'kh{h}')
dl = [f for i in range(nq, 8) for f in qdma(i)]
dl.pop(0)()
for h in range(NH):
    a.wait(lds=f'kh{h}')
    swap16(HK + 4 * h)
    mfma32(HP + 16 * h, HW + 4 * h, HK + 4 * h, None)
dl.pop(0)()
dl.pop(0)()
prio(args.hprio)
stream(capture(lambda: [phi_k(h, HP + 16 * h, HT, hPW) for h in range(NH)]), spread(dl + we[args.we0:] + ([fills] if args.fwho == 'h' else []), 0.0, args.fat))
stamp(5)
stamp(5, 'e')
barrier(vm='q7', lds='all')
prio(args.kprio)
stamp(6)
stamp(6, 'e')
VF, PF, D0 = 32, 48, 80
for T in range(5):
    if T < 4:
        for sg in range(2):
            for u in range(2):
                I(f'ds_read_b64_tr_b16 {vr(PF+8*T+4*sg+2*u,2)}, v{hPR+sg} offset:{PHI+T*2048+u*512}', f'k{T}')
        for u in range(2):
            I(f'ds_read_b64_tr_b16 {vr(VF+4*T+2*u,2)}, v{hVR} offset:{T*1024+u*512}', f'k{T}')
    if T >= 1:
        a.wait(lds=f'k{T-1}')
        if T == args.ksig:
            a.wait(vm='fill')
            signal(sHL)
        for sg in range(2):
            mfma16(D0 + 4 * sg, PF + 8 * (T - 1) + 4 * sg, VF + 4 * (T - 1), None if T == 1 else D0 + 4 * sg)
        for sg in range(2):
            mfma16(D0 + 8 + 4 * sg, PF + 8 * (T - 1) + 4 * sg, ONES, None if T == 1 else D0 + 8 + 4 * sg)
a.wait(vm='fill')
if 'k' in args.force:
    signal(sHL)
    I(f's_and_b32 s{sT0}, s{sC}, 3\ns_cmp_eq_u32 s{sT0}, 1\ns_cbranch_scc0 L_fk')
    I('s_sleep 40')
    a.label('L_fk')
for j in range(2):
    for i in range(4):
        I(f'v_cvt_pk_bf16_f32 v{HK+4*j+i}, v{D0+8*j+2*i}, v{D0+8*j+2*i+1}')
    I(f'buffer_store_dwordx4 {vr(HK+4*j,4)}, v{(hKS, hZS)[j]}, {sr(S_WS,4)}, 0 offen offset:{1024*j} sc1', 'kvst')
if 'k' not in args.force and args.ksig == 5:
    signal(sHL)
prio(0)
stamp(7)
stamp(7, 'e')
I(f's_lshl_b32 s{sT0}, s{sWv}, 13\ns_lshl_b32 s{sT1}, s{sWv}, 16\ns_lshl_b32 s{sT2}, s{sWv}, 12\ns_lshl_b32 s{sT3}, s{sWv}, 15')


def wo_mid(j):
    if j < 8:
        I(f's_add_u32 m0, s{sT0}, {PHI+1024*j}\ns_add_u32 s{sD}, s{sT1}, {8192*j}')
    else:
        I(f's_add_u32 m0, s{sT2}, {VIM+1024*(j-8)}\ns_add_u32 s{sD}, s{sT3}, {4*65536+8192*(j-8)}')
    I(f'buffer_load_dwordx4 v{30 if j & 1 else hWX}, {sr(S_WOB,4)}, s{sD} offen lds', 'wo')


def part_load(P, sg):
    so = f's{sW+P}'
    if sg < 4:
        I(f'buffer_load_dwordx4 {vr(PART+16*P+4*sg,4)}, v{hPL}, {sr(S_WS,4)}, {so} offen offset:{sg*256} sc1', f'p{P}{sg}')
    else:
        I(f'buffer_load_dwordx4 {vr(ZP+4*P,4)}, v{hZL}, {sr(S_WS,4)}, {so} offen offset:1024 sc1', f'p{P}4')


plist = [(lambda P, sg: (lambda: part_load(P, sg)))(P, sg) for P in range(4) for sg in range(5)]
for j in range(12):
    if j == args.mid0:
        count_issue(sHL)
    wo_mid(j)
    if j < 8:
        I(f'v_mov_b32 v{SEL+j}, v{SEL0+j}')
for f in halves(WEARLY[:args.wem], 0, 'wo'):
    f()
flush(hs2)
for P in range(4):
    if args.krot:
        I(f's_add_u32 s{sD}, s{sC}, {P}\ns_and_b32 s{sD}, s{sD}, 3\ns_mul_i32 s{sW+P}, s{sD}, {4*KSTR}')
    else:
        I(f's_mov_b32 s{sW+P}, {P*4*KSTR}')
unpark()
a.wait(lds='all')
stamp(8, 'e')
lates = lambda: halves([('A', g) for g in range(3 - args.wel, 8)], 0, 'woa')
for _ in range(args.npoll - 1):
    I(f's_cmp_ge_u32 s{sPV}, 16\ns_cbranch_scc1 L_quick')
    count_issue(sHL)
    I('s_waitcnt lgkmcnt(0)')
I(f's_cmp_ge_u32 s{sPV}, 16\ns_cbranch_scc0 L_slow1')
a.label('L_quick')
q1 = list(a.vmq)
for f in plist[:args.nlb]:
    f()
a.wait(vm='wo')
signal(sOFF)
I('s_barrier')
stamp(9, 'e')
stream(capture(wo_frags)[:args.nf0], spread(plist[args.nlb:] + lates()[:args.nl0]) if args.nlb < 20 or args.nl0 else [])
I('s_branch L_sums')
a.label('L_slow1')
a.vmq = list(q1)
count_issue(sHL)
a.wait(vm='all')
signal(sOFF)
I('s_barrier')
stamp(9, 'e')
I(f's_waitcnt lgkmcnt(0)\ns_cmp_ge_u32 s{sPV}, 16\ns_cbranch_scc0 L_slow2')
stream(capture(wo_frags)[:args.nf0], spread(plist + lates()[:args.nl0]))
I('s_branch L_sums')
a.label('L_slow2')
a.vmq = []
count_issue(sHL)
flush(capture(wo_frags)[:args.nf0])
a.label('L_again')
sspin(lambda: count_issue(sHL), 16, first=False)
for f in plist + lates()[:args.nl0]:
    f()
a.label('L_sums')
count_issue(sPF)
stamp(8)
stamp(10, 'e')
prio(3)
for P in range(4):
    for sg in range(5):
        a.wait(vm=f'p{P}{sg}')
        if sg < 4:
            d = DS_ + 4 * (sg >> 1)
            mfma16(d, SEL + 4 * (sg & 1), PART + 16 * P + 4 * sg, None if P == 0 and sg % 2 == 0 else d)
        else:
            mfma16(DS_ + 8, SEL, ZP + 4 * P, None if P == 0 else DS_ + 8)
I(f's_bitcmp1_b32 s{sHL}, 6')
I(f'v_add_f32 v{DS_+12}, v{DS_}, v{DS_+4}\nv_cmp_u_f32 vcc, v{DS_+12}, v{DS_+8}')
I('s_cbranch_scc1 L_take\ns_cbranch_vccz L_take')
I(f's_add_u32 s{sHL}, s{sHL}, 64\ns_waitcnt lgkmcnt(0)\ns_mov_b32 s{sPV}, 0\ns_branch L_again')
a.label('L_take')
for q in range(3):
    d = DS_ + 4 * q
    I(f'v_cvt_pk_bf16_f32 v{d}, v{d}, v{d+1}\nv_cvt_pk_bf16_f32 v{d+1}, v{d+2}, v{d+3}')
    if q < 2:
        I(f'ds_write_b64 v{hKW}, {vr(d,2)} offset:{16*q}')
    else:
        I('s_mov_b32 exec_hi, 0')
        I(f'ds_write_b64 v{hZW}, {vr(d,2)} offset:1280')
        I('s_mov_b64 exec, -1')
stamp(11, 'e')
prio(0)
if args.nl1x or args.nf1x:
    stream(capture(wo_frags)[args.nf0:args.nf0 + args.nf1x], spread(lates()[args.nl0:args.nl0 + args.nl1x]) if args.nl1x else [])
    args.nf0 += args.nf1x
    args.nl0 += args.nl1x
barrier(lds='all')
stamp(9)
p2_consts()
olist = [(lambda k: (lambda: o_load(k)))(k) for k in range(args.npb)]
I(f's_cmp_ge_u32 s{sPV}, 8\ns_cbranch_scc0 L_hlate')
stamp(11)
stamp(5, 'm')
stream(capture(wo_frags)[args.nf0:], spread(lates()[args.nl0:] + [gate_loads] + olist[:args.pbar]))
I(f's_waitcnt vmcnt({args.pbar+2}) lgkmcnt(0)\ns_barrier')
for f in olist[args.pbar:]:
    f()
I('s_branch L_p2mb')
a.label('L_hlate')
count_issue(sPF)
stream(capture(wo_frags)[args.nf0:], spread(lates()[args.nl0:], 0.0, 0.6) if args.nl0 < len(lates()) else [])
I(f's_waitcnt lgkmcnt(0)\ns_cmp_ge_u32 s{sPV}, 8\ns_cbranch_scc0 L_hlate2')
stamp(11)
stamp(5, 'm')
gate_loads()
for f in olist[:2]:
    f()
I('s_waitcnt vmcnt(4)\ns_barrier')
for f in olist[2:]:
    f()
I('s_branch L_p2mb')
a.label('L_hlate2')
count_issue(sPF)
I('s_waitcnt vmcnt(0)\ns_barrier\ns_branch L_p2chk')

a.label('L_acomp')
a.vmq, a.lq = [], []
cXR, cWR, cPW, cHD, cVW, cWP, cSG, cTR = 2, 8, 22, 24, 25, 26, 27, 30
ACK, ACV, RING, KF, X = 32, 64, 96, 120, 128
I('s_waitcnt lgkmcnt(0)')
prologue_w(0)
prologue_rest(0)
srd_tail(S_WS, WS_REC)
I(f's_lshl_b32 s{sT3}, s{sRB}, 12')
x16_addr(cXR, ACV, sT3)
w16_addr(cWR, ACV)
for h in range(1, 4):
    I(f'v_xor_b32 v{cWR+h}, {32*h}, v{cWR}')
for wn in (1, 2):
    for h in range(4):
        I(f'v_add_u32 v{cWR+4*wn+h}, {wn*0x10000}, v{cWR+h}')
I(f'v_subrev_u32 v{vWo2}, 0x8000, v{vWoO}')
late_scalars()
wphi_addr(cWP, cSG, ACV)
phi_addr(cPW, cHD, ACV)
I(f'v_and_b32 v{ACV}, 15, v1\nv_lshrrev_b32 v{ACV+1}, 4, v1\nv_bfe_u32 v{ACV+2}, v1, 1, 2\nv_xor_b32 v{ACV+1}, v{ACV+1}, v{ACV+2}')
I(f'v_lshlrev_b32 v{cVW}, 6, v{ACV}\nv_lshl_or_b32 v{cVW}, v{ACV+1}, 4, v{cVW}')
I(f's_lshl_b32 s{sT0}, s{sRB}, 10\ns_add_u32 s{sT0}, s{sT0}, {VIM}\nv_add_u32 v{cVW}, s{sT0}, v{cVW}')
I(f's_mov_b32 s{sONE}, 2\ns_mov_b32 s{sHP}, 0')
join_addr(ACV)
p2_scalars('A')
I('s_waitcnt lgkmcnt(0)')
if args.tw:
    page_touch(255)
stamp(1)


def tr2(dst, addr, h, tag):
    wn, off = win(addr)
    assert off + 512 <= 0xFFFF
    I(f'ds_read_b64_tr_b16 {vr(dst,2)}, v{cWR+4*wn+h} offset:{off}', tag)
    I(f'ds_read_b64_tr_b16 {vr(dst+2,2)}, v{cWR+4*wn+h} offset:{off+512}', tag)


def g_reads(f):
    n, t = f >> 3, f & 7
    base = SLOT(n // 2)
    if t == 0:
        for i in range(2):
            wn, off = win(base + 2048 * i)
            I(f'ds_read_b128 {vr(X+8*n+4*i,4)}, v{cXR+2*wn+(n&1)} offset:{off}', f'g{f}')
    tr2(RING + 4 * t, base + (2 + (t >> 2)) * BLK + (n & 1) * 4096, t & 3, f'g{f}')


LG = args.lg
rd = []
for f in range(128 + LG):
    if f < 128 and f % 16 == 0:
        flush(rd)
        barrier(vm='all' if f == 96 else None, lds='all' if f == 112 else None)
        if f:
            stamp(4 + f // 16, 'b')
        if f == 0:
            stamp(2)
            prio(2)
    if f < 128:
        rd += capture(lambda: g_reads(f))
    if f == 124 + LG:
        rd += capture(lambda: [I(f'ds_read_b64_tr_b16 {vr(RING+4*h+2*u,2)}, v{cWP} offset:{h*512+u*128}', 'wq') for h in (2, 3, 0, 1) for u in range(2)])
    for i in range(2):
        if f >= LG:
            j = f - LG
            n, t = j >> 3, j & 7
            if i == 0 and j % 2 == 0:
                a.wait(lds=f'g{j+1}')
            acc = ACK + 8 * t + 4 * i
            mfma16(acc, RING + 4 * t, X + 8 * n + 4 * i, None if n == 0 else acc)
        for _ in range(2 if len(rd) > 2 - i else 1):
            if rd:
                a.I(*rd.pop(0))
assert not rd
stamp(3)
WQ, CT = RING, RING + 16


def pack(src, d):
    for i in range(4):
        I(f'v_cvt_pk_bf16_f32 v{d+i}, v{src+2*i}, v{src+2*i+1}')


QR, NQR, LQ = ACV, 6, args.lq
order = [(n, 2 * ct + e) for ct in range(2) for n in range(16) for e in range(2)]
qread = lambda k: tr2(QR + 4 * (k % NQR), QBLK[order[k][0] // 2] * BLK + (order[k][0] & 1) * 4096, order[k][1], f'q{k}')
vi = capture(lambda: [(pack(ACV + 8 * h, ACV + 8 * h), I(f'ds_write_b128 v{cVW}, {vr(ACV+8*h,4)} offset:{h*4096}', 'side')) for h in range(4)])
zipped = lambda x, y: [z for xy in zip(x, y) for z in xy] if args.zip else x + y
if NH == 2:
    for h in range(2):
        pack(ACK + 8 * h, CT + 4 * h)
        I(f'ds_write_b128 v{cHD}, {vr(CT+4*h,4)} offset:{PHI+h*8192}', 'hand')
    pack(ACK + 16, CT + 8)
    if args.s2e:
        barrier(lds='all')
        stamp(4)
    pack(ACK + 24, CT + 12)
    swap16(CT + 8)
    a.wait(lds='wq')
    swap16(CT + 12)
    for i in range(8, 16):
        I(f'v_xor_b32 v{WQ+i}, v{cSG}, v{WQ+i}')
    if not args.s2e:
        barrier(lds='all')
        stamp(4)
    for h in (2, 3):
        mfma32(ACK + 16 * (h - 2), WQ + 4 * h, CT + 4 * h, None)
    prio(args.cprio)
    ph = capture(lambda: [phi_k(h, ACK + 16 * (h - 2), CT, cPW) for h in (2, 3)])
    xr = [(f'v_xor_b32 v{WQ+i}, v{cSG}, v{WQ+i}', None) for i in range(8)]
    pre = capture(lambda: [qread(k) for k in range(LQ)]) if args.qpr else []
    flush(vi[:10] + ph[:24] + vi[10:15] + ph[24:44] + vi[15:] + ph[44:-8] + pre + ph[-8:] + ([] if args.xlate else xr))
else:
    barrier(lds='all')
    stamp(4)
    for i in range(8):
        I(f'v_xor_b32 v{WQ+i}, v{cSG}, v{WQ+i}')
    for h in range(4):
        pack(ACK + 8 * h, CT + 4 * h)
    for h in range(2):
        mfma32(ACK + 16 * h, WQ + 4 * h, CT + 4 * h, None)
    xr = [(f'v_xor_b32 v{WQ+i}, v{cSG}, v{WQ+i}', None) for i in range(8, 16)]
    flush(vi[:5] + xr[:4] + vi[5:10] + xr[4:] + vi[10:])
    for h in (2, 3):
        mfma32(ACK + 16 * h, WQ + 4 * h, CT + 4 * h, None)
    pk_ = lambda h: capture(lambda: phi_k(h, ACK + 16 * h, CT + 8 * (h & 1), cPW))
    flush(zipped(pk_(0), pk_(1)) + zipped(pk_(2), pk_(3)))
stamp(5)
stamp(5, 'e')
barrier(lds='all')
prio(2)
stamp(6)
stamp(6, 'e')
PQ4 = (32, 128, 144, 160)
QT = ACV + 24
front = capture(lambda: [pack(ACK, CT), pack(ACK + 8, CT + 4), swap16(CT), swap16(CT + 4), mfma32(PQ4[0], WQ, CT, None)])
sm0 = capture(lambda: softmax16(PQ4[0], QT, 0))
t0 = None
cwl = halves(WEARLY[5 - args.wec:], 1, 'wo')
if not (args.qpr and NH):
    for k in range(LQ):
        qread(k)
for k in range(LQ, 64 + LQ):
    j = k - LQ
    rd = capture(lambda: qread(k)) if k < 64 else []
    n, h = order[j]
    if j % 2 == 0:
        a.wait(lds=f'q{j+1}')
    for i in range(2):
        acc = ACK + 8 * h + 4 * i
        mfma16(acc, QR + 4 * (j % NQR), X + 8 * n + 4 * i, None if n == 0 else acc)
        if rd:
            a.I(*rd.pop(0))
        if cwl and i == 1:
            cwl.pop(0)()
        if args.xlate and 20 <= j < 24:
            a.I(*xr[2 * (j - 20) + i])
        room = 1 + (not rd and k >= 64)
        if j >= 34 and front:
            a.I(*front.pop(0))
            t0 = j
        elif t0 and j == t0 + 2:
            if i:
                mfma32(PQ4[1], WQ + 4, CT + 4, None)
        elif t0 and j >= t0 + 3 and (i == 0 or j % 2 == 0 or args.qown > 2):
            for _ in range(room):
                a.I(*sm0.pop(0))
    if j == 32:
        stamp(7, 'e')
print('first query head left after pass Q:', len(sm0))
stamp(7)
stamp(8, 'e')
if args.svpos == 0:
    barrier(vm='all')
flush(sm0[:12])
for h in (2, 3):
    pack(ACK + 8 * h, CT + 4 * h)
for h in (2, 3):
    swap16(CT + 4 * h)
for h in (2, 3):
    mfma32(PQ4[h], WQ + 4 * h, CT + 4 * h, None)
flush(sm0[12:])
stamp(9, 'e')
if args.svpos == 1:
    I('s_barrier')
stamp(10, 'e')
softmax16(PQ4[1], QT, args.pk)
flush(zipped(capture(lambda: softmax16(PQ4[2], QT, args.pk)), capture(lambda: softmax16(PQ4[3], QT - 8, args.pk))))
stamp(8)
stamp(11, 'e')
I('s_barrier')
stamp(9)
if 'a' in args.force:
    signal(sFL)
    I(f's_and_b32 s{sT0}, s{sG}, 3\ns_cmp_eq_u32 s{sT0}, 1\ns_cbranch_scc0 L_fa')
    I('s_sleep 30')
    a.label('L_fa')
KV4, NU4 = 176, 48
for h in range(4):
    for t in range(2):
        I(f'ds_read_b128 {vr(KV4+8*h+4*t,4)}, v{vKR} offset:{h*1360+t*16}', f'kv{h}')


def o_tail(h, pk):
    N = NU4 + 16 * h
    I(f'v_add_f32 v{N+8}, 0x358637bd, v{N+8}\nv_rcp_f32 v{N+8}, v{N+8}')
    for i in range(4):
        if pk:
            I(f'v_pk_mul_f32 {vr(N+2*i,2)}, {vr(N+2*i,2)}, {vr(N+8,2)} op_sel_hi:[1,0]')
        else:
            I(f'v_mul_f32 v{N+2*i}, v{N+2*i}, v{N+8}\nv_mul_f32 v{N+2*i+1}, v{N+2*i+1}, v{N+8}')
    for i in range(4):
        I(f'v_cvt_pk_bf16_f32 v{N+i}, v{N+2*i}, v{N+2*i+1}')
    I(f'buffer_store_dwordx4 {vr(N,4)}, v{vOS}, {sr(S_WS,4)}, 0 offen offset:{h*1024} sc1')
    if h + 1 == args.osig and h < 3:
        signal(sFL)


tails = []
for h in range(4):
    a.wait(lds=f'kv{h}')
    if h == 3 and args.osig == 0:
        signal(sFL)
    for t in range(2):
        mfma32(NU4 + 16 * h, KV4 + 8 * h + 4 * t, PQ4[h] + 4 * t, None if t == 0 else NU4 + 16 * h)
        if h >= 2:
            emit_slots(tails, 6)
    tails += capture(lambda: o_tail(h, h >= 2))
flush(tails)
if 'a' not in args.force and args.osig == 4:
    signal(sFL)
I(f's_add_u32 s{sFL}, s{sFL}, 64')
stamp(10)
for t_, tag in capture(lambda: p2_setup(CT, cWR)):
    if not t_.startswith('ds_write'):
        a.I(t_, tag)
p2_consts()
I(f'v_add_u32 v{pXW}, {XA}, v{pXW}')
I('s_barrier')
fr = capture(wo_frags)
for x in fr[:args.nfr]:
    a.I(*x)
count_issue(sPF)
for x in fr[args.nfr:]:
    a.I(*x)
I('s_waitcnt vmcnt(0) lgkmcnt(0)')
signal(sFL)
I(f's_cmp_ge_u32 s{sPV}, 8\ns_cbranch_scc1 L_p2go')
count_issue(sPF)
I('s_branch L_p2chk')

a.label('L_roleB')
a.vmq, a.lq = list(topq), []
BSL = 41 * 1024
BS = lambda s: (s % 3) * BSL
KI = 3 * BSL
QI = 4 * BLK
WMAP.update(B=[11, 12, 13, 14, 0, 1, 2, 3], A=[4, 5, 8, 9, 15, 16, 17, 18])
bXR, bWR, bHW, bHX = 8, 16, 18, 20
bKW, bHWR, bKP, bVR, bOS, bGS, bGR, bQA, bGW = 24, 25, 26, 27, 28, 29, 30, 22, 23
GI = XL + XGO
BIAS, MSK, BT = 188, 208, 220
QF, KFB, KP, VA = 128, 136, 144, 152


def b_ids():
    prologue_rest(1)
    srd_tail(S_WS, WS_REC)
    srd_tail(S_MISC, 1024)
    I(f's_and_b32 s{sT0}, s{sWv}, 1\ns_lshl_b32 s{sT0}, s{sT0}, 1\ns_xor_b32 s{sRB}, s{sHP}, 1\ns_add_u32 s{sRB}, s{sRB}, s{sT0}')
    I(f's_bfe_u32 s{sHP}, s{sWv}, 0x10001')


def b_setup(br):
    late_scalars()
    I(f'v_and_b32 v{BT+1}, 7, v1')
    I(f's_lshl_b32 s{sT0}, s{sC}, 3\ns_add_u32 s{sT0}, s{sT0}, s{sG}\ns_lshl_b32 s{sT0}, s{sT0}, 9\ns_lshl_b32 s{sT1}, s{sRB}, 7\ns_add_u32 s{sT0}, s{sT0}, s{sT1}\ns_add_u32 s{sT0}, s{sT0}, {GP}')
    I(f'v_lshlrev_b32 v{bGR}, 2, v1\nv_add_u32 v{bGS}, s{sT0}, v{bGR}\nv_mov_b32 v{BT+4}, {OOB:#x}')
    I(f's_cmp_eq_u32 s{sHP}, 0\ns_cselect_b32 s{sT0}, 32, 0')
    I(f'v_cmp_gt_u32 vcc, s{sT0}, v1\nv_cndmask_b32 v{bGS}, v{BT+4}, v{bGS}, vcc')
    I(f's_lshl_b32 s{sT0}, s{sRB}, 8\ns_add_u32 s{sT0}, s{sT0}, {GI}\nv_add_u32 v{bGR}, s{sT0}, v{bGR}')
    I(f's_mul_i32 s{sT0}, s{sHP}, 8704\ns_lshl_b32 s{sT1}, s{sRB}, 10\ns_add_u32 s{sT0}, s{sT0}, s{sT1}\ns_add_u32 s{sT0}, s{sT0}, {KI}')
    I(f'v_lshrrev_b32 v{BT+2}, 5, v1\nv_and_b32 v{BT+3}, 31, v1\nv_lshlrev_b32 v{bKW}, 5, v{BT+3}\nv_lshl_or_b32 v{bKW}, v{BT+2}, 4, v{bKW}\nv_add_u32 v{bKW}, s{sT0}, v{bKW}')
    I(f'v_lshlrev_b32 v{bKP}, 5, v{BT+1}\nv_lshl_or_b32 v{bKP}, v{BT+2}, 4, v{bKP}\nv_add_u32 v{bKP}, s{sT0}, v{bKP}')
    if args.bsw:
        I(f'v_and_b32 v{BT+4}, 4, v1\nv_lshlrev_b32 v{BT+4}, 2, v{BT+4}\nv_xor_b32 v{bKW}, v{bKW}, v{BT+4}\nv_xor_b32 v{bKP}, v{bKP}, v{BT+4}')
    I(f'v_bfe_u32 v{BT+4}, v1, 2, 2\nv_lshl_add_u32 v{BT+4}, v{BT+2}, 2, v{BT+4}\nv_lshlrev_b32 v{bVR}, 5, v{BT+4}')
    I(f'v_and_b32 v{BT+4}, 1, v1\nv_lshl_or_b32 v{bVR}, v{BT+4}, 4, v{bVR}\nv_bfe_u32 v{BT+4}, v1, 1, 1\nv_lshl_or_b32 v{bVR}, v{BT+4}, 3, v{bVR}')
    if args.bsw:
        I(f'v_lshlrev_b32 v{BT+4}, 4, v{BT+2}\nv_xor_b32 v{bVR}, v{bVR}, v{BT+4}')
    I(f'v_bfe_u32 v{BT+4}, v1, 4, 1\nv_mul_u32_u24 v{BT+4}, 4352, v{BT+4}\nv_add3_u32 v{bVR}, v{bVR}, v{BT+4}, s{sT0}')
    I(f's_and_b32 s{sT0}, s{sWv}, 3\ns_lshl_b32 s{sT0}, s{sT0}, 11\ns_add_u32 s{sT0}, s{sT0}, {QI}\nv_lshlrev_b32 v{bQA}, 4, v1\nv_add_u32 v{bQA}, s{sT0}, v{bQA}')
    o_addrs(bOS, OB, FB)
    I(f'v_lshlrev_b32 v{BT+2}, 2, v{BT+2}\nv_sub_u32 v{BT+2}, v{BT+3}, v{BT+2}\ns_lshr_b32 s{sT0}, s{sC}, 1\ns_or_b32 s{sT0}, s{sT0}, s{sRB}')
    I(f's_cmp_eq_u32 s{sT0}, 0\ns_cselect_b32 s{sT0}, 1000, 8')
    I(f'v_add_u32 v{BT+3}, s{sT0}, v{BT+2}\nv_mov_b32 v{BT+4}, 0xf149f2ca\nv_mov_b32 v{BT+5}, 0xffff\nv_mov_b32 v{BT+6}, 0xffff0000\nv_mov_b32 v{BT+10}, 0')
    for r in range(20):
        aa, b = r >> 2, r & 3
        if r < 16:
            I(f'v_subrev_u32 v{BT+8}, {8*aa+b}, v{BT+2}')
        else:
            I(f'v_subrev_u32 v{BT+8}, {b}, v{BT+3}')
        md = MSK + r // 2 if b % 2 == 0 else BT + 9
        I(f'v_cmp_ge_u32 vcc, 7, v{BT+8}\nv_cndmask_b32 v{BIAS+r}, v{BT+4}, v{BT+10}, vcc\nv_cndmask_b32 v{md}, 0, v{BT+5+b%2}, vcc')
        if b % 2:
            I(f'v_or_b32 v{MSK+r//2}, v{MSK+r//2}, v{BT+9}')
    p2_scalars(br)
    w16_addr(BT + 2, BT)
    p2_setup(BT, BT + 2, PARK)


vWO2, vHO = 34, 7
BG, BH, BHF, GF, GXF = 48, 64, 72, 96, 112


def b_dx(s, q):
    need_k(s)
    I(f's_add_u32 m0, s{sLX}, {BS(s)+1024*(q&1)+8192*(q>>1)}')
    I(f'buffer_load_dwordx4 v{(vXO, vXO+1, vXO2, vXO2+1)[q]}, {sr(S_X,4)}, s{sK} offen lds', f'st{s}')


def b_dw(s, j, q):
    I(f's_add_u32 m0, s{sLW}, {BS(s)+16384+j*BLK+4096*q-1024*j}')
    I(f'buffer_load_dwordx4 v{(vWQ, vWO2)[q]}, {sr(S_W,4)}, s{sW+s} offen offset:{1024*j} lds', f'st{s}')


def b_halo(s):
    I(f's_add_u32 m0, s{sHL}, {BS(s)+40960}')
    I('s_mov_b64 exec, 0xffff')
    I(f'buffer_load_dwordx4 v{vHO}, {sr(S_X,4)}, s{sK} offen lds', f'st{s}')
    I('s_mov_b64 exec, -1')


def b_stage(s):
    q = [(lambda q: (lambda: b_dx(s, q)))(q) for q in range(4)]
    q += [(lambda j, q: (lambda: b_dw(s, j, q)))(j, q) for j in range(3) for q in range(2)]
    q.append(lambda: b_halo(s))
    return q


st0 = b_stage(0)
prologue_w(1)
I(f's_and_b32 s{sT2}, s{sWv}, 1\ns_lshl_b32 s{sT2}, s{sT2}, 5\nv_xor_b32 v{vWQ}, s{sT2}, v{vWQ}')
I(f'v_add_u32 v{vWO2}, {32*3072}, v{vWQ}')
if not args.bdelay:
    for f in st0[4:10]:
        f()
stamp(6, 's')
b_ids()
I(f's_lshl_b32 s{sT1}, s{sWv}, 1\ns_lshl_b32 s{sT0}, s{sWv}, 12\ns_add_u32 s{sT0}, s{sT0}, s{sOFF}\ns_sub_u32 s{sT0}, s{sT0}, 0x4000')
I(f'v_and_b32 v{vHO}, 7, v1\nv_xor_b32 v{vHO}, s{sT1}, v{vHO}\nv_lshlrev_b32 v{vHO}, 4, v{vHO}\nv_lshl_or_b32 v{vHO}, v8, 11, v{vHO}\nv_add_u32 v{vHO}, s{sT0}, v{vHO}')
I(f's_lshl_b32 s{sHL}, s{sWv}, 8')
st0[10]()
I('s_waitcnt lgkmcnt(0)')
I(f'v_lshrrev_b32 v{BT+8}, 5, v1\nv_lshlrev_b32 v{BT+8}, 4, v{BT+8}\ns_lshl_b32 s{sT0}, s{sG}, 7')
for t in range(4):
    I(f'buffer_load_dwordx4 {vr(GF+4*t,4)}, v{BT+8}, {sr(S_MISC,4)}, s{sT0} offen offset:{32*t}', 'st0')
I(f's_sub_u32 s{sGS}, s{sG}, s{sROT}\ns_and_b32 s{sGS}, s{sGS}, 7')
I(f'v_and_b32 v{bXR}, 31, v1\nv_lshrrev_b32 v{BT}, 5, v1\nv_bfe_u32 v{BT+1}, v1, 1, 3\nv_lshlrev_b32 v{bXR}, 7, v{bXR}')
I(f'v_xor_b32 v{BT}, v{BT}, v{BT+1}\ns_lshl_b32 s{sT0}, s{sWv}, 12\nv_lshl_or_b32 v{bXR}, v{BT}, 4, v{bXR}\nv_add_u32 v{bXR}, s{sT0}, v{bXR}')
w16_addr(bHW, BT)
I(f's_lshl_b32 s{sT0}, s{sWv}, 5\nv_xor_b32 v{bHW}, s{sT0}, v{bHW}\nv_add_u32 v{bHW+1}, 0x10000, v{bHW}')
I(f'v_and_b32 v{BT+1}, 7, v1\nv_and_b32 v{BT+2}, 6, v1\nv_xor_b32 v{BT+2}, v{BT+2}, v{BT}\nv_lshlrev_b32 v{bHX}, 7, v{BT+1}\nv_lshl_or_b32 v{bHX}, v{BT+2}, 4, v{bHX}')
I(f'v_xor_b32 v{bHX+1}, 64, v{bHX}\nv_add_u32 v{bXR+4}, 0x10000, v{bHX}\nv_add_u32 v{bXR+5}, 0x10000, v{bHX+1}')
I(f'v_lshlrev_b32 v{bHWR}, 5, v{BT+1}\nv_lshl_or_b32 v{bHWR}, v{BT}, 3, v{bHWR}\ns_mul_i32 s{sT0}, s{sWv}, 4352\ns_add_u32 s{sT0}, s{sT0}, {KI}\nv_add_u32 v{bHWR}, s{sT0}, v{bHWR}')
I(f's_lshl_b32 s{sT0}, s{sWv}, 8\ns_add_u32 s{sT0}, s{sT0}, {GI}\nv_lshlrev_b32 v{bGW}, 2, v1\nv_add_u32 v{bGW}, s{sT0}, v{bGW}')
SENB, vBF, vGF = 36, 35, 40


def b_fill_setup():
    I(f's_lshl_b32 s{sT0}, s{sC}, 2\ns_add_u32 s{sT0}, s{sT0}, s{sWv}\ns_mul_i32 s{sT1}, s{sT0}, {OSTR}\ns_lshl_b32 s{sT2}, s{sG}, 12\ns_add_u32 s{sT1}, s{sT1}, s{sT2}\ns_add_u32 s{sT1}, s{sT1}, {OB}')
    I(f'v_lshlrev_b32 v{vGF}, 4, v1\nv_add_u32 v{vBF}, s{sT1}, v{vGF}')
    I(f's_lshl_b32 s{sT0}, s{sC}, 3\ns_add_u32 s{sT0}, s{sT0}, s{sG}\ns_lshl_b32 s{sT0}, s{sT0}, 9\ns_lshl_b32 s{sT1}, s{sWv}, 7\ns_add_u32 s{sT0}, s{sT0}, s{sT1}\ns_add_u32 s{sT0}, s{sT0}, {GP}\nv_add_u32 v{vGF}, s{sT0}, v{vGF}')
    for i in range(4):
        I(f'v_mov_b32 v{SENB+i}, -1')


def b_fill(h):
    if h < 4:
        I(f'buffer_store_dwordx4 {vr(SENB,4)}, v{vBF}, {sr(S_WS,4)}, 0 offen offset:{h*1024} sc1', 'bfill')
    else:
        I('s_mov_b64 exec, 0xff')
        I(f'buffer_store_dwordx4 {vr(SENB,4)}, v{vGF}, {sr(S_WS,4)}, 0 offen sc1', 'bfill')
        I('s_mov_b64 exec, -1')


stamp(7, 's')
hset = capture(lambda: [b_setup('B'), b_fill_setup()])
st1 = b_stage(1)
if args.bx1:
    for f in st1[:4] + st1[10:]:
        f()
    st1 = st1[4:10]
kk = int(len(hset) * args.bfrac)
flush(hset[:kk])
hset = hset[kk:]
if args.bdelay:
    for f in st0[4:10]:
        f()
for f in st1[:args.bs1]:
    f()
if not args.blate:
    flush(hset)
for f in st1[args.bs1:]:
    f()
stamp(8, 's')
if args.nib == 3:
    for f in b_stage(2):
        f()
stamp(1)
prio(args.hb)
bwo = [('B', g) for g in range(8)]


def halo_mfma(first):
    if args.hb != 3:
        prio(3)
    for T in range(2):
        r = BHF + 12 * T
        for j in range(2):
            mfma16(BH + 4 * j, r + 4 + 4 * j, r, None if first and T == 0 else BH + 4 * j)
    if args.hb != 3:
        prio(args.hb)


def halo_reads(base):
    for T in range(2):
        r = BHF + 12 * T
        wn, off = win(base + 40960)
        I(f'ds_read_b128 {vr(r,4)}, v{(bHX, bXR+4)[wn]+T} offset:{off}')
        for j in range(2):
            wn, off = win(base + 16384 + (1 + j) * BLK + T * 4096)
            assert off + 512 <= 0xFFFF and wn < 2
            for u in range(2):
                I(f'ds_read_b64_tr_b16 {vr(r+4+4*j+2*u,2)}, v{bHW+wn} offset:{off+512*u}')


def warm_q():
    I(f's_load_dwordx2 s[{S_MISC}:{S_MISC+1}], s[0:1], 8')
    I(f's_and_b32 s{sT0}, s2, 127\ns_lshl2_add_u32 s{sT0}, s{sT0}, s{sWv}\ns_mul_i32 s{sT0}, s{sT0}, 3072\ns_waitcnt lgkmcnt(0)')
    I(f's_add_u32 s{S_MISC}, s{S_MISC}, s{sT0}\ns_addc_u32 s{S_MISC+1}, s{S_MISC+1}, 0')
    for j in range(8):
        I(f's_load_dword s{sT3}, s[{S_MISC}:{S_MISC+1}], {128*j}')


def warm_o(base):
    I(f's_and_b32 s{sT0}, s2, 127\ns_lshl2_add_u32 s{sT0}, s{sT0}, s{sWv}\ns_lshl_b32 s{sT0}, s{sT0}, 10')
    I(f's_add_u32 s{S_MISC}, s{base}, s{sT0}\ns_addc_u32 s{S_MISC+1}, s{base+1}, 0')
    for j in range(8):
        I(f's_load_dword s{sT3}, s[{S_MISC}:{S_MISC+1}], {128*j}')


assert args.chalo and args.hearly
for s in range(8):
    if s:
        stamp(4 + s, 'b0')
        a.wait(vm=f'st{s}')
        stamp(4 + s, 'b')
    barrier(vm=f'st{s}')
    if s == 0:
        stamp(2)
    base = BS(s)
    if s == 0 and args.nib == 3:
        q = []
    elif s <= 5:
        q = b_stage(s + 2)
    elif s == 6:
        q = halves(bwo[:4], 0, 'wo')
    else:
        q = halves(bwo[4:], 0, 'wo')
    if args.bspec and s == args.bfill:
        q = q + [(lambda h: (lambda: b_fill(h)))(h) for h in range(5)]
    if q:
        q.pop(0)()
    if s and not args.chalo:
        halo_mfma(s == 1)
    rd = capture(lambda: halo_reads(base)) if not args.chalo else []
    while q or rd:
        if rd:
            a.I(*rd.pop(0))
        if q:
            q.pop(0)()
        emit_side(hset, args.blate)
    skip = newlabel('nog')
    I(f's_cmp_eq_u32 s{sGS}, {s}\ns_cbranch_scc0 {skip}')
    I(f'v_add_u32 v{bXR}, {base}, v{bXR}')
    for t in range(4):
        if t:
            I(f'v_xor_b32 v{bXR+1}, {32*t}, v{bXR}')
        I(f'ds_read_b128 {vr(GXF+4*t,4)}, v{bXR+(1 if t else 0)}')
    a.wait(lds='all')
    if args.gerl:
        for t in range(4):
            mfma32(BG, GF + 4 * t, GXF + 4 * t, None if t == 0 else BG)
    a.label(skip)
    if s == args.sq:
        warm_q()
    if s == args.so:
        warm_o(S_WOB)
    if s == args.so + 1 and args.so >= 0:
        warm_o(S_WOA)
    if s == 6:
        ready_issue()
flush(hset)
a.wait(lds='all')
if not args.chalo:
    halo_mfma(False)
if not args.gerl:
    for t in range(4):
        mfma32(BG, GF + 4 * t, GXF + 4 * t, None if t == 0 else BG)
prio(0)
for j in range(0 if args.chalo else 2):
    d = BH + 4 * j
    I(f'v_cvt_pk_bf16_f32 v{d}, v{d}, v{d+1}\nv_cvt_pk_bf16_f32 v{d+1}, v{d+2}, v{d+3}')
    I(f'ds_write_b64 v{bHWR}, {vr(d,2)} offset:{17408*j}')
I(f'ds_write_b32 v{bGW}, v{BG}')
ready_check(BT)
stamp(3)
barrier(vm=None if args.bsplit else 'bfill', lds='all')
for h in range(2):
    I(f'ds_read_b128 {vr(QF+4*h,4)}, v{bQA} offset:{h*1024}')
    I(f'ds_read_b128 {vr(KFB+4*h,4)}, v{bKW} offset:{256+h*4352}')
BHA = [('A', 2), ('A', 3), ('A', 1)][:args.bha]
for f in halves(BHA, 0, 'wo'):
    f()
I('s_branch L_battn')

a.label('L_bcomp')
a.vmq, a.lq = [], []
BACC, BX, BWR_ = 32, 128, 160
I('s_waitcnt lgkmcnt(0)')
prologue_w(1)
b_ids()
I(f's_and_b32 s{sT3}, s{sWv}, 1\ns_lshl_b32 s{sT3}, s{sT3}, 13')
x16_addr(bXR, BT, sT3)
w16_addr(bWR, BT)
I(f's_lshl_b32 s{sT0}, s{sHP}, 6\nv_xor_b32 v{bWR}, s{sT0}, v{bWR}\nv_xor_b32 v{bWR+1}, 32, v{bWR}\nv_add_u32 v{bWR+2}, 0x10000, v{bWR}\nv_add_u32 v{bWR+3}, 0x10000, v{bWR+1}')
I('s_waitcnt lgkmcnt(0)')
I(f's_lshl_b32 s{sGS}, s{sWv}, 8\ns_add_u32 s{sGS}, s{sGS}, s2\ns_cmp_eq_u32 s{sGS}, {CLR}\ns_cbranch_scc0 L_noclear')
I(f'v_mov_b32 v{BT}, 0\nv_lshlrev_b32 v{BT+4}, 7, v1')
for j in range(5):
    I(f's_mov_b32 s{sT0}, {FK+8192*j}')
    I(f'buffer_store_dword v{BT}, v{BT+4}, {sr(S_WS,4)}, s{sT0} offen sc1', cond=True)
    I(f'buffer_store_dword v{BT}, v{BT+4}, {sr(S_WS,4)}, s{sT0} offen offset:64 sc1', cond=True)
a.label('L_noclear')
if 'o' in args.tch:
    srd_tail(S_WOA, 524288)
    srd_tail(S_WOB, 524288)
    I(f's_and_b32 s{sT0}, s{sC}, 7\ns_lshl_b32 s{sT0}, s{sT0}, 6\nv_add_u32 v{BT}, s{sT0}, v1\ns_lshl_b32 s{sT1}, s{sG}, 7\nv_lshlrev_b32 v{BT}, 10, v{BT}')
    I(f's_lshr_b32 s{sT0}, s{sC}, 3\ns_add_u32 s{sT0}, s{sT0}, 5\ns_cmp_eq_u32 s{sWv}, s{sT0}\ns_cbranch_scc0 L_warm4')
    I(f's_cmp_eq_u32 s{sWv}, 5\ns_cbranch_scc1 L_warm3')
    I(f'buffer_load_dword v{BT+11}, v{BT}, {sr(S_WOB,4)}, s{sT1} offen')
    I('s_branch L_warm4')
    a.label('L_warm3')
    I(f'buffer_load_dword v{BT+11}, v{BT}, {sr(S_WOA,4)}, s{sT1} offen')
    a.label('L_warm4')
if 'q' in args.tch:
    I(f's_cmp_eq_u32 s{sWv}, 4\ns_cbranch_scc0 L_warm5')
    I(f's_load_dwordx2 s[{sM0}:{sM0+1}], s[0:1], 8')
    I(f'v_and_b32 v{BT}, 31, v1\ns_lshl_b32 s{sT0}, s{sC}, 5\nv_add_u32 v{BT}, s{sT0}, v{BT}\nv_mul_u32_u24 v{BT}, 3072, v{BT}\ns_lshl_b32 s{sT1}, s{sG}, 7\nv_add_u32 v{BT}, s{sT1}, v{BT}')
    I(f's_waitcnt lgkmcnt(0)\nglobal_load_dword v{BT+11}, v{BT}, s[{sM0}:{sM0+1}]')
    a.label('L_warm5')
cset = capture(lambda: b_setup('A'))
I(f's_mov_b32 s{sONE}, 1')
if args.cearly:
    flush(cset)
if args.tw:
    page_touch(255)
stamp(1)


JORD = (1, 0, 2)


def c_x(n, i):
    wn, off = win(BS(n >> 1) + 2048 * i)
    I(f'ds_read_b128 {vr(BX+16*(n%2)+4*i,4)}, v{bXR+2*wn+(n&1)} offset:{off}', f'r{n}x')


def c_w(n, t):
    wn, off = win(BS(n >> 1) + 16384 + JORD[t >> 1] * BLK + (n & 1) * 4096)
    assert off + 512 <= 0xFFFF and wn < 2
    for u in range(2):
        I(f'ds_read_b64_tr_b16 {vr(BWR_+4*t+2*u,2)}, v{bWR+2*wn+(t&1)} offset:{off+512*u}', f'r{n}w{t}')


def c_stage_barrier(s, rp):
    if s:
        stamp(4 + s, 'b0')
    barrier(lds='all' if s else None)
    if s:
        stamp(4 + s, 'b')
    if s == 0:
        stamp(2)
        prio(2)
    if s == args.fstage and rp:
        I(f's_cmp_eq_u32 s{sGS}, {CLR}\ns_cbranch_scc0 L_noready')
        I(f's_waitcnt vmcnt(0)\ns_atomic_add s{sONE}, s[{S_DBG}:{S_DBG+1}], 0x0')
        a.label('L_noready')


assert args.cearly
CHX, CH, cHX = 184, 232, 12


def c_h(n):
    wn, off = win(BS(n >> 1) + 40960)
    I(f'ds_read_b128 {vr(CHX,4)}, v{cHX+2*wn+(n&1)} offset:{off}', f'r{n}h')


def c_loop(rp):
    c_stage_barrier(0, rp)
    c_x(0, 0); c_x(0, 1); c_w(0, 0); c_x(0, 2); c_x(0, 3); c_w(0, 1); c_w(0, 2); c_w(0, 3)
    for n in range(16):
        for t in range(6):
            if t == 2 and n % 2 == 1 and n < 15:
                c_stage_barrier((n + 1) >> 1, rp)
            if t % 2 == 0:
                a.wait(lds=f'r{n}w{t+1}')
            m = n + 1
            if t == 0:
                rd = capture(lambda: [c_h(n) if args.chalo else None, c_w(n, 4), c_w(n, 5)])
            elif t == 1:
                pass
            elif m == 16:
                rd = []
            elif t < 4:
                rd = capture(lambda: [c_x(m, 2 * t - 4), c_x(m, 2 * t - 3), c_w(m, t - 2)])
            else:
                rd = capture(lambda: c_w(m, t - 2))
            for i in range(4):
                acc = BACC + 32 * JORD[t >> 1] + 16 * (i >> 1) + 8 * (t & 1) + 4 * (i & 1)
                mfma16(acc, BWR_ + 4 * t, BX + 16 * (n % 2) + 4 * i, None if n == 0 else acc)
                if rd:
                    a.I(*rd.pop(0))
            if args.chalo and t == 1:
                a.wait(lds=f'r{n}h')
                mfma16(CH, BWR_ + 4 * rp, CHX, None if n == 0 else CH)
            if args.chalo and t == 5:
                mfma16(CH + 4, BWR_ + 16 + 4 * rp, CHX, None if n == 0 else CH + 4)


if args.chalo:
    I(f'v_lshrrev_b32 v{BT}, 4, v1\nv_and_b32 v{BT+1}, 7, v1\nv_and_b32 v{BT+2}, 6, v1\nv_xor_b32 v{BT+2}, v{BT+2}, v{BT}\nv_lshlrev_b32 v{cHX}, 7, v{BT+1}\nv_lshl_or_b32 v{cHX}, v{BT+2}, 4, v{cHX}')
    I(f'v_xor_b32 v{cHX+1}, 64, v{cHX}\nv_add_u32 v{cHX+2}, 0x10000, v{cHX}\nv_add_u32 v{cHX+3}, 0x10000, v{cHX+1}')
    I(f'v_lshlrev_b32 v{bHWR}, 5, v{BT+1}\nv_lshl_or_b32 v{bHWR}, v{BT}, 3, v{bHWR}\ns_and_b32 s{sT0}, s{sWv}, 3\ns_mul_i32 s{sT0}, s{sT0}, 4352\ns_add_u32 s{sT0}, s{sT0}, {KI}\nv_add_u32 v{bHWR}, s{sT0}, v{bHWR}')
    if args.bsw:
        I(f'v_and_b32 v{BT}, 4, v1\nv_lshlrev_b32 v{BT}, 2, v{BT}\nv_xor_b32 v{bHWR}, v{bHWR}, v{BT}')
    I(f's_bitcmp1_b32 s{sWv}, 0\ns_cbranch_scc1 L_bodd')
    c_loop(0)
    I('s_branch L_bloopend')
    a.label('L_bodd')
    a.lq = []
    c_loop(1)
    a.label('L_bloopend')
else:
    c_loop(1)
stamp(3)
CT = 164
items = [(1, 1, h) for h in range(2)] + [(0, 1, h) for h in range(2)] + [(1, 0, h) for h in range(2)] + [(0, 0, h) for h in range(2)]
vitems = [(2, k, h) for k in range(2) for h in range(2)]


def b_out(lst, base):
    dsts = []
    for c_, (j, k, h) in enumerate(lst):
        dsts.append(KFB + 4 * h if (j, k) == (1, 0) else QF + 4 * h if (j, k) == (0, 0) else base + 4 * (c_ % 4))
    for c_ in range(len(lst) + 1):
        if c_ < len(lst):
            j, k, h = lst[c_]
            pack16(BACC + 32 * j + 16 * k + 8 * h, dsts[c_])
        if c_ >= 1:
            j, k, h = lst[c_ - 1]
            d = dsts[c_ - 1]
            swap16(d)
            if j == 0:
                if k == 1:
                    I(f'ds_write_b128 v{bQA}, {vr(d,4)} offset:{h*1024}')
            else:
                msk = args.kmask and (j, k) == (1, 0)
                if msk:
                    I('s_mov_b32 exec_lo, 0xff000000\ns_mov_b32 exec_hi, 0xff000000')
                I(f'ds_write_b128 v{bKW}, {vr(d,4)} offset:{(256, 256+17408)[j-1]+h*4352+1024*k}')
                if msk:
                    I('s_mov_b64 exec, -1')


def c_halo_out():
    for j in range(2):
        d = CH + 4 * j
        I(f'v_cvt_pk_bf16_f32 v{d}, v{d}, v{d+1}\nv_cvt_pk_bf16_f32 v{d+1}, v{d+2}, v{d+3}')
        I(f'ds_write_b64 v{bHWR}, {vr(d,2)} offset:{17408*j}')


if args.bsplit:
    b_out(items, CT)
    if args.chalo:
        c_halo_out()
    stamp(5, 'a')
    barrier(lds='all')
    stamp(6, 'a')
    if not args.vlate:
        b_out(vitems, CT)
else:
    b_out(items[:6] + vitems + items[6:], CT)
    if args.chalo:
        c_halo_out()
    barrier(lds='all')
SC, SP, PFR, OO = (32, 48), (64, 80), (164, 176), (96, 112)


def b_scores(own):
    for h in range(2):
        I(f'ds_read_b128 {vr(KP+4*h,4)}, v{bKP} offset:{h*4352}', f'kp{h}')
    if not own:
        a.wait(lds='kp0')
    for h in range(2):
        mfma32(SC[h], KFB + 4 * h, QF + 4 * h, BIAS)
    for h in range(2):
        a.wait(lds=f'kp{h}')
        mfma32(SP[h], KP + 4 * h, QF + 4 * h, BIAS + 4)


if args.vlate:
    b_scores(True)
    b_out(vitems, BT)
    prio(args.bprio)
    I('s_branch L_bsoft')
else:
    prio(args.bprio)
a.label('L_battn')
a.vmq = []
a.lq = []
b_scores(False)
a.label('L_bsoft')
stamp(4)


def v_reads():
    for t in range(2):
        for u in range(2):
            I(f'ds_read_b64_tr_b16 {vr(VA+4*t+2*u,2)}, v{bVR} offset:{17408+256+t*512+u*256}', 'va')
    I(f'ds_read_b32 v{bGR}, v{bGR}', 'va')
    I(f'ds_read_b64_tr_b16 {vr(VA+8,2)}, v{bVR} offset:{17408}', 'va')


QS = 0x3EB8AA3B


def b_attn():
    H = range(2)
    m = [SC[h] + 4 for h in H]
    for b in range(4):
        for h in H:
            I(f'v_max3_f32 v{SC[h]+b}, v{SC[h]+b}, v{SC[h]+4+b}, v{SC[h]+8+b}')
    for b in range(4):
        for h in H:
            I(f'v_max3_f32 v{SC[h]+b}, v{SC[h]+b}, v{SC[h]+12+b}, v{SP[h]+12+b}')
    for h in H:
        I(f'v_max3_f32 v{m[h]}, v{SC[h]}, v{SC[h]+1}, v{SC[h]+2}')
    for h in H:
        I(f'v_max_f32 v{m[h]}, v{m[h]}, v{SC[h]+3}')
    I(f'v_permlane32_swap_b32 v{m[0]}, v{m[1]}')
    I(f'v_max_f32 v{m[0]}, v{m[0]}, v{m[1]}')
    I(f'v_mul_f32 v{m[1]}, {QS|0x80000000:#x}, v{m[0]}\nv_mul_f32 v{m[0]}, {QS|0x80000000:#x}, v{m[0]}')
    I(f'v_permlane32_swap_b32 v{m[0]}, v{m[1]}')
    for b in range(4):
        for h in H:
            I(f'v_fmamk_f32 v{SC[h]+b}, v{SC[h]+b}, {QS:#x}, v{m[h]}')
    for b in range(4):
        for h in H:
            I(f'v_exp_f32 v{SC[h]+b}, v{SC[h]+b}')
    for h in H:
        I(f'v_add_f32 v{m[h]}, v{SC[h]}, v{SC[h]+1}')
    for h in H:
        I(f'v_add_f32 v{m[h]+1}, v{SC[h]+2}, v{SC[h]+3}')
    for h in H:
        I(f'v_add_f32 v{m[h]}, v{m[h]}, v{m[h]+1}')
    I(f'v_permlane32_swap_b32 v{m[0]}, v{m[1]}')
    I(f'v_add_f32 v{m[0]}, v{m[0]}, v{m[1]}\nv_rcp_f32 v{m[0]}, v{m[0]}\nv_mov_b32 v{m[1]}, v{m[0]}')
    I(f'v_permlane32_swap_b32 v{m[0]}, v{m[1]}')
    for b in range(4):
        for h in H:
            I(f'v_mul_f32 v{SC[h]+b}, v{SC[h]+b}, v{m[h]}')
    for e in range(2):
        for h in H:
            I(f'v_cvt_pk_bf16_f32 v{SC[h]+e}, v{SC[h]+2*e}, v{SC[h]+2*e+1}')


def b_mask(h, js):
    for j in js:
        I(f'v_and_b32 v{PFR[h]+j}, v{SC[h]+(j&1)}, v{MSK+j}')


assert args.bsplit and args.bspec and args.bfill == 7
stamp(7, 'a')
stream(capture(b_attn), [(args.vbar2, lambda: (stamp(8, 'a'), I(f's_waitcnt vmcnt({2*len(BHA)}) lgkmcnt(0)\ns_barrier'), stamp(9, 'a'), v_reads()))])
b_mask(0, range(8, 10))
b_mask(1, range(8, 10))
stamp(10, 'a')
a.wait(lds='va')
if args.bsig == 0:
    signal(sFL)
if 'b' in args.force:
    signal(sFL)
    I(f's_and_b32 s{sT0}, s{sG}, 3\ns_cmp_eq_u32 s{sT0}, 2\ns_cbranch_scc0 L_fb')
    I('s_sleep 30')
    a.label('L_fb')
for h in range(2):
    I(f'v_mfma_f32_32x32x8_bf16 {vr(OO[h],16)}, {vr(VA+8,2)}, {vr(PFR[h]+8,2)}, 0')
    b_mask(h, range(5))
for k in range(2):
    for h in range(2):
        mfma32(OO[h], VA + 4 * k, PFR[h] + 4 * k, OO[h])
        if k == 0:
            b_mask(h, range(5, 8))
stamp(11, 'a')
if args.bsig == 1:
    signal(sFL)
for h in range(2):
    O = OO[h] + 8 * h
    for i in range(4):
        I(f'v_cvt_pk_bf16_f32 v{O+i}, v{O+2*i}, v{O+2*i+1}')
    I(f'buffer_store_dwordx4 {vr(O,4)}, v{bOS}, {sr(S_WS,4)}, 0 offen offset:{h*1024} sc1', 'ost')
I(f'buffer_store_dword v{bGR}, v{bGS}, {sr(S_WS,4)}, 0 offen sc1', 'ost')
if args.bspec:
    if 'b' not in args.force and args.bsig == 2:
        signal(sFL)
    I(f's_add_u32 s{sFL}, s{sFL}, 64')
stamp(5)
stamp(12, 'a')
prio(0)
unpark()
p2_consts()
I(f's_cmp_eq_u32 s{sBR}, 0')
I('s_barrier')
stamp(10)
I('s_cbranch_scc1 L_bhi')
for x in fr[:args.nfb]:
    a.I(*x)
if not args.bspec:
    I('s_waitcnt vmcnt(0)')
    signal(sFL)
count_issue(sPF)
for x in fr[args.nfb:]:
    a.I(*x)
I('s_waitcnt vmcnt(0) lgkmcnt(0)')
if args.bspec:
    signal(sFL)
I(f's_cmp_ge_u32 s{sPV}, 8\ns_cbranch_scc0 L_blate')
a.label('L_bgo')
stamp(11)
stamp(5, 'm')
gate_loads()
for k in range(args.npb + 1):
    if k == min(args.bbar, args.npb):
        I('s_barrier')
    if k < args.npb:
        o_load(k)
I('s_branch L_p2mb')
a.label('L_blate')
count_issue(sPF)
I(f's_waitcnt lgkmcnt(0)\ns_cmp_ge_u32 s{sPV}, 8\ns_cbranch_scc1 L_bgo')
count_issue(sPF)
I('s_barrier\ns_branch L_p2chk')
a.label('L_bhi')
I(f'v_subrev_u32 v{vWo2}, 0x8000, v{vWoO}\nv_add_u32 v{pXW}, {XA}, v{pXW}')
lw = halves([('A', g) for g in range(8) if ('A', g) not in BHA], 1, 'wol')
for f in lw[:args.blw]:
    f()
I(f's_waitcnt vmcnt({args.blw})')
signal(sFL)
for f in lw[args.blw:]:
    f()
I('s_waitcnt vmcnt(0)\ns_barrier')
count_issue(sPF)
wo_frags()

a.label('L_p2chk')
a.vmq, a.lq = [], []
sspin(lambda: count_issue(sPF), 8, first=False)
a.label('L_p2go')
stamp(11)
stamp(5, 'm')
def p_step(k, gap=None):
    a.wait(vm=f'o{k}')
    if k in (0, 4, 8, 12, 15):
        stamp(7 + (k + 1) // 4, 'm')
    for c in range(4):
        acc = ACC + 16 * (k < 8) + 4 * c
        mfma16(acc, WOF + 16 * (k & 7) + 4 * c, OF + 4 * k, None if k & 7 == 0 else acc)
        if gap:
            gap(4 * (k - 8) + c)


def project(npre, gap):
    stamp(6, 'm')
    for k in range(16):
        p_step(k, gap if k >= 8 else None)
        if k + npre < 16:
            o_load(k + npre)
    stamp(12)
    stamp(12, 'm')


def own_check(tag):
    I(f's_bitcmp1_b32 s{sPF}, 6\nv_cmp_u_f32 vcc, v{ACC}, v{ACC}')
    I(f's_cbranch_scc1 L_take{tag}\ns_cbranch_vccz L_take{tag}')
    I(f's_add_u32 s{sPF}, s{sPF}, 64')
    q = list(a.lq)
    sspin(lambda: count_issue(sPF), 8)
    for k in range(8, 16):
        o_load(k)
    saved, args.stamps = args.stamps, 0
    for k in range(8, 16):
        p_step(k)
    args.stamps = saved
    a.lq = q
    a.label(f'L_take{tag}')


def give(other):
    lb = newlabel('give')
    I(f's_bitcmp1_b32 s{sPF}, 6\nv_cmp_u_f32 vcc, v{ACC+16}, v{other}')
    I(f's_cbranch_scc1 {lb}\ns_cbranch_vccnz L_redo')
    a.label(lb)


xwrite = lambda e: I(f'ds_write_b128 v{pXW}, {vr(ACC+16+4*e,4)} offset:{e*1024}', 'xw')
I(f's_cmp_eq_u32 s{sBR}, 0\ns_cbranch_scc1 L_p2a')
gate_loads()
for k in range(args.npb):
    o_load(k)
a.label('L_p2mb')
bsteps = {
    0: lambda: I(f'v_permlane32_swap_b32 v{pG}, v{pG+1}'),
    1: lambda: I(f'v_add_f32 v{pG}, v{pG}, v{pG+1}'),
    2: lambda: I(f'v_mov_b32 v{pG+1}, v{pG}'),
    4: lambda: I(f'v_permlane16_swap_b32 v{pG}, v{pG+1}'),
    5: lambda: I(f'v_add_f32 v{pG}, v{pG}, v{pG+1}'),
    6: lambda: give(pG),
    7: lambda: (I(f'v_min_u32 v{pG}, -2, v{pG}'), xwrite(0)),
    8: lambda: I(f'v_mov_b32 v{pG+1}, v{pG}'),
    10: lambda: (I(f'v_permlane32_swap_b32 v{pG}, v{pG+1}'), xwrite(1)),
    13: lambda: xwrite(2), 16: lambda: xwrite(3),
    22: lambda: (a.wait(lds='xw'), I(f'ds_write_b32 v{pLF+1}, v{pG+1}')),
}
project(args.npb, lambda i: bsteps.get(i, lambda: None)())
spin(lambda: I(f'ds_read_b32 v{pG+1}, v{pLF}'), lambda: I(f'v_cmp_eq_u32 vcc, -1, v{pG+1}'), lds=True)
for e in range(4):
    I(f'ds_read_b128 {vr(OF+4*e,4)}, v{pXR} offset:{XB+e*1024}', f'xb{e}')
I(f'v_add_f32 v{pT}, v{pG}, v{pG+1}\nv_mul_f32 v{pT}, {NLOG2E:#x}, v{pT}\nv_exp_f32 v{pT}, v{pT}\nv_add_f32 v{pT}, 1.0, v{pT}\nv_rcp_f32 v{pG}, v{pT}')
I(f'v_sub_f32 v{pT}, 1.0, v{pG}')
I(f'ds_write_b32 v{pLF}, v{pG} offset:{XGO}')
own_check('b')
for e in range(4):
    a.wait(lds=f'xb{e}')
    for i in range(4 * e, 4 * e + 4):
        I(f'v_add_f32 v{ACC+i}, v{ACC+i}, v{OF+i}')
    for i in range(4 * e, 4 * e + 4):
        I(f'v_mul_f32 v{ACC+i}, v{ACC+i}, v{pT}')
    I(f'ds_write_b128 v{pXR}, {vr(ACC+4*e,4)} offset:{XB+e*1024}')
barrier(lds='all')
I('s_branch L_done')
a.label('L_redo')
I(f's_add_u32 s{sPF}, s{sPF}, 64\ns_mov_b32 s{sPV}, 0\ns_waitcnt vmcnt(0)\ns_nop 7\ns_branch L_p2chk')
a.label('L_p2a')
a.vmq, a.lq = [], []
prio(args.aprio)
for k in range(NPRE):
    o_load(k)
rds = capture(lambda: [I(f'ds_read_b32 v{pG}, v{pLF} offset:{XGO}', 'f')] + [(I(f'ds_read_b128 {vr(OF+4*e,4)}, v{pXR} offset:{XA+e*1024}', 'f'), I(f'ds_read_b128 {vr(OF+16+4*e,4)}, v{pXR} offset:{XB+e*1024}', 'f')) for e in range(4)])
fm = [(f'v_fmac_f32 v{OF+16+i}, v{OF+i}, v{pG}', None) for i in range(16)]


def agap(i):
    if i == args.xw0:
        give(ACC + 16)
    if i >= args.xw0 + 1 and (i - args.xw0 - 1) % 2 == 0 and (i - args.xw0 - 1) // 2 < 4:
        xwrite((i - args.xw0 - 1) // 2)
    if i == args.xb:
        barrier(lds='all')
    if i >= args.xb:
        for _ in range(2):
            if rds:
                a.I(*rds.pop(0))
    if i == args.xf:
        assert not rds
        a.wait(lds='all')
    if i >= args.xf:
        for _ in range(2):
            if fm:
                a.I(*fm.pop(0))


project(NPRE, agap)
flush(fm)
own_check('a')
for i in range(8):
    I(f'v_pk_fma_f32 {vr(ACC+2*i,2)}, {vr(ACC+2*i,2)}, {vr(pG,2)}, {vr(OF+16+2*i,2)} op_sel_hi:[1,0,1]')
    if i >= 1:
        I(f'v_cvt_pk_bf16_f32 v{ACC+16+i-1}, v{ACC+2*i-2}, v{ACC+2*i-1}')
    if i == 6:
        swap16(ACC + 16)
        I(f'buffer_store_dwordx4 {vr(ACC+16,4)}, v{pOUT}, {sr(S_OUT,4)}, s{sPOUT} offen {args.outsc}')
I(f'v_cvt_pk_bf16_f32 v{ACC+23}, v{ACC+14}, v{ACC+15}')
swap16(ACC + 20)
I(f'buffer_store_dwordx4 {vr(ACC+20,4)}, v{pOUT}, {sr(S_OUT,4)}, s{sPOUT} offen offset:64 {args.outsc}')
a.label('L_done')
if args.pad:
    stamp(13)
if args.stamps:
    I('s_waitcnt vmcnt(0)')
    stamp(13)
    I('s_waitcnt lgkmcnt(0)')
    for k in range(NST):
        I(f'v_mov_b32 v{32+k}, s{STAMP_S+2*k}')
    I(f's_lshl_b32 s{sT0}, s2, 3\ns_add_u32 s{sT0}, s{sT0}, s{sWv}\ns_lshl_b32 s{sT0}, s{sT0}, 6\ns_add_u32 s{sT0}, s{sT0}, {STAMPS}')
    I('s_mov_b64 exec, 1')
    for j in range(4):
        I(f'buffer_store_dwordx4 {vr(32+4*j,4)}, off, {sr(S_WS,4)}, s{sT0} offset:{16*j}')
a.label('L_end')
I('s_endpgm')
a.raw(f'.if (L_end - {NAME}_kernel) > 49152\n.error "code prefetch too short"\n.endif\n.fill (49664 - (L_end - {NAME}_kernel)) / 4, 4, 0xbf810000')
a.raw('.section .rodata,"a"')
a.raw('.p2align 6')
a.raw(f'.amdhsa_kernel {NAME}_kernel')
a.raw('  .amdhsa_next_free_vgpr 256\n  .amdhsa_next_free_sgpr 102\n  .amdhsa_accum_offset 256\n  .amdhsa_group_segment_fixed_size 0\n  .amdhsa_kernarg_size 88\n  .amdhsa_user_sgpr_count 2\n  .amdhsa_user_sgpr_kernarg_segment_ptr 1\n  .amdhsa_system_sgpr_workgroup_id_x 1')
a.raw('.end_amdhsa_kernel')
if args.align:
    from align import align
    a.lines = '\n'.join(a.lines).split('\n')
    print('widened', align(a.lines))
open(args.o, 'w').write(a.text())
json.dump(dict(OSTR=OSTR, OA=OA, OB=OB, KSTR=KSTR, KVP=KVP, GP=GP, FK=FK, FA=FA, FB=FB, STAMPS=STAMPS, CYC=int(args.stamps == 2), NST=NST, XR=args.xr), open(args.o + '.json', 'w'))
print('lines', len(a.lines), 'nops', a.nops)
```

```python
import sys, argparse, json
sys.path.insert(0, 'gen')
from asmlib import Asm, vr, sr

NAME = 'gated_mix__linear_kernel_hedgehog__sliding_local_dilated__prompt'
ap = argparse.ArgumentParser()
ap.add_argument('-o', default=f'cdna_kernels/{NAME}.s')
ap.add_argument('--stamps', type=int, default=0)
ap.add_argument('--rot', type=int, default=1)
ap.add_argument('--opad', type=int, default=9216)
ap.add_argument('--lag', type=int, default=3)
ap.add_argument('--flagstep', type=int, default=12)
ap.add_argument('--pk', type=int, default=1)
ap.add_argument('--spin', type=int, default=1 << 20)
ap.add_argument('--codepf', type=int, default=1)
ap.add_argument('--budget', type=int, default=24)
ap.add_argument('--ni', type=int, default=3)
ap.add_argument('--delta', type=int, default=8)
ap.add_argument('--vgap', type=int, default=2)
ap.add_argument('--wgap', type=int, default=2)
ap.add_argument('--pollstep', type=int, default=27)
ap.add_argument('--outsc', default='sc1')
ap.add_argument('--vstart', type=int, default=25)
ap.add_argument('--b1', type=int, default=2)
ap.add_argument('--b2hi', type=float, default=0.3)
ap.add_argument('--b3lo', type=float, default=0.5)
ap.add_argument('--b5lo', type=int, default=12)
ap.add_argument('--wo1', type=int, default=5)
ap.add_argument('--prio', type=int, default=1)
ap.add_argument('--abar', default='0:1,8:4,20:7')
ap.add_argument('--ahi', default='0.1,0.55')
ap.add_argument('--vstep', type=int, default=4)
ap.add_argument('--s1', type=int, default=0)
ap.add_argument('--hside', type=int, default=2)
ap.add_argument('--b5hi', type=int, default=24)
ap.add_argument('--retry', type=int, default=1024)
ap.add_argument('--warm', type=int, default=1)
ap.add_argument('--swap16', type=int, default=1)
ap.add_argument('--lagv', type=int, default=4)
ap.add_argument('--bpat', default='222200')
ap.add_argument('--bwait', type=int, default=2)
ap.add_argument('--fstage', type=int, default=0)
ap.add_argument('--kside', type=int, default=4)
ap.add_argument('--npre', type=int, default=10)
ap.add_argument('--early', type=int, default=2)
ap.add_argument('--nohalo', type=int, default=0)
ap.add_argument('--qgap', type=int, default=3)
ap.add_argument('--logap', type=int, default=2)
ap.add_argument('--fkpos', type=int, default=6)
ap.add_argument('--vq0', type=int, default=0)
ap.add_argument('--touch', type=int, default=-1)
ap.add_argument('--hearly', type=int, default=2)
ap.add_argument('--nfr', type=int, default=8)
ap.add_argument('--kvpoll', type=float, default=0.45)
ap.add_argument('--psleep', type=int, default=0)
ap.add_argument('--nfa', type=int, default=8)
ap.add_argument('--tch', default='XABo')
ap.add_argument('--lowo', type=int, default=3)
ap.add_argument('--nib', type=int, default=2)
ap.add_argument('--top', default='n')
ap.add_argument('--cearly', type=int, default=1)
ap.add_argument('--cslots', type=int, default=2)
ap.add_argument('--ospec', type=int, default=1)
ap.add_argument('--nmid', type=int, default=12)
ap.add_argument('--npre1', type=int, default=4)
ap.add_argument('--mid0', type=int, default=4)
ap.add_argument('--s4c', type=float, default=0.5)
ap.add_argument('--hq0', type=int, default=32)
ap.add_argument('--nl1', type=int, default=4)
ap.add_argument('--lpre', type=int, default=1)
ap.add_argument('--pend', type=float, default=0.8)
ap.add_argument('--sv', type=int, default=44)
ap.add_argument('--qown', type=int, default=2)
ap.add_argument('--nlb', type=int, default=16)
ap.add_argument('--we0', type=int, default=2)
ap.add_argument('--fat', type=float, default=0.3)
ap.add_argument('--npoll', type=int, default=2)
ap.add_argument('--cprio', type=int, default=0)
ap.add_argument('--bspec', type=int, default=1)
ap.add_argument('--bfill', type=int, default=7)
ap.add_argument('--nfb', type=int, default=32)
ap.add_argument('--aprio', type=int, default=0)
ap.add_argument('--q0', type=int, default=0)
ap.add_argument('--kprio', type=int, default=3)
ap.add_argument('--bdelay', type=int, default=1)
ap.add_argument('--l2wo', type=int, default=-1)
ap.add_argument('--nh', type=int, default=2)
ap.add_argument('--qpr', type=int, default=0)
ap.add_argument('--zip', type=int, default=1)
ap.add_argument('--map', type=int, default=0)
ap.add_argument('--fake16', default='')
ap.add_argument('--bsplit', type=int, default=1)
ap.add_argument('--bprio', type=int, default=1)
ap.add_argument('--vbar2', type=float, default=0.7)
ap.add_argument('--hb', type=int, default=3)
ap.add_argument('--chalo', type=int, default=1)
ap.add_argument('--kmask', type=int, default=0)
ap.add_argument('--sq', type=int, default=-1)
ap.add_argument('--so', type=int, default=-1)
ap.add_argument('--gerl', type=int, default=1)
ap.add_argument('--tlb', type=int, default=1)
ap.add_argument('--bfrac', type=float, default=0.7)
ap.add_argument('--bx1', type=int, default=0)
ap.add_argument('--afrac', type=float, default=0.6)
ap.add_argument('--hsb', type=int, default=16)
ap.add_argument('--hlate', type=int, default=1)
ap.add_argument('--nt', type=int, default=0)
ap.add_argument('--ntm', default='nt')
ap.add_argument('--xr', type=int, default=0)
ap.add_argument('--fwho', default='h')
ap.add_argument('--fst', type=int, default=7)
ap.add_argument('--vsw', type=int, default=1)
ap.add_argument('--nl1x', type=int, default=8)
ap.add_argument('--nf1x', type=int, default=28)
ap.add_argument('--xlate', type=int, default=1)
ap.add_argument('--bs1', type=int, default=0)
ap.add_argument('--bsw', type=int, default=1)
ap.add_argument('--blate', type=int, default=0)
ap.add_argument('--tw', default='')
ap.add_argument('--force', default='')
ap.add_argument('--osig', type=int, default=4)
ap.add_argument('--ksig', type=int, default=5)
ap.add_argument('--bsig', type=int, default=2)
ap.add_argument('--npb', type=int, default=10)
ap.add_argument('--orot', type=int, default=0)
ap.add_argument('--krot', type=int, default=1)
ap.add_argument('--align', type=int, default=0)
ap.add_argument('--lg', type=int, default=4)
ap.add_argument('--hp1', type=int, default=0)
ap.add_argument('--hs2', type=float, default=0.0)
ap.add_argument('--qmax', type=int, default=5)
ap.add_argument('--wec', type=int, default=0)
ap.add_argument('--wel', type=int, default=2)
ap.add_argument('--wem', type=int, default=0)
ap.add_argument('--bbar', type=int, default=16)
ap.add_argument('--blw', type=int, default=6)
ap.add_argument('--bha', type=int, default=3)
ap.add_argument('--vlate', type=int, default=1)
ap.add_argument('--lq', type=int, default=4)
ap.add_argument('--xw0', type=int, default=2)
ap.add_argument('--xb', type=int, default=14)
ap.add_argument('--xf', type=int, default=22)
ap.add_argument('--nlock', type=int, default=1)
ap.add_argument('--ahead', type=int, default=8)
ap.add_argument('--upj', type=int, default=0)
ap.add_argument('--lin', default='')
ap.add_argument('--wst', type=int, default=-1)
ap.add_argument('--qst', type=int, default=-1)
ap.add_argument('--tpos', type=int, default=0)
ap.add_argument('--sw', default='')
ap.add_argument('--s2e', type=int, default=0)
ap.add_argument('--nl0', type=int, default=2)
ap.add_argument('--nf0', type=int, default=12)
ap.add_argument('--svpos', type=int, default=0)
ap.add_argument('--pbar', type=int, default=5)
ap.add_argument('--hmove', type=int, default=0)
ap.add_argument('--wsplit', type=int, default=1)
ap.add_argument('--nown', type=int, default=1)
ap.add_argument('--dk', type=int, default=2)
ap.add_argument('--vafter', default='222')
ap.add_argument('--s1v', type=int, default=1)
ap.add_argument('--s3', type=int, default=20)
ap.add_argument('--s3h', type=float, default=0.4)
ap.add_argument('--s4', type=int, default=10)
ap.add_argument('--lk', type=int, default=2)
ap.add_argument('--cside', type=int, default=2)
ap.add_argument('--wprio', type=int, default=0)
ap.add_argument('--qafter', default='22')
ap.add_argument('--qsplit', type=int, default=0)
ap.add_argument('--apat', default='3330')
ap.add_argument('--kpk', type=int, default=1)
ap.add_argument('--hprio', type=int, default=0)
ap.add_argument('--hburst', type=int, default=0)
ap.add_argument('--vburst', type=int, default=0)
ap.add_argument('--pa', type=int, default=8)
ap.add_argument('--wotail', type=int, default=0)
ap.add_argument('--ctlag', type=int, default=0)
ap.add_argument('--poll0', type=int, default=21)
ap.add_argument('--pad', type=int, default=0)
ap.add_argument('--padat', type=int, default=13)
ap.add_argument('--vprio', type=int, default=0)
ap.add_argument('--dbg', default='')
ap.add_argument('--order', type=int, default=1)
ap.add_argument('--vbar', type=int, default=0)
args = ap.parse_args()

OSTR = 32768 + args.opad
OA = 0
OB = 64 * OSTR
KSTR = 4608
KVP = 128 * OSTR
GP = KVP + 128 * KSTR
FK = GP + 128 * 512
FA = FK + 32 * 128
FB = FA + 128 * 128
WS_USED = FB + 128 * 128
STAMPS = 16 << 20
WS_REC = 32 << 20
OOB = 0x7FFFFFF0
assert WS_USED < STAMPS and FK % 128 == 0

CLK = 's_memtime' if args.stamps == 2 else 's_memrealtime'
LOG2E = 0x3FB8AA3B
NLOG2E = 0xBFB8AA3B
BLK = 8192
NST = 14

S_X, S_W, S_WOA, S_WOB, S_WS, S_OUT, S_MISC, S_DBG = 4, 8, 12, 16, 20, 24, 28, 32
STAMP_S = 36
sK, sW = 64, 72
sLX, sLW, sT1, sT2 = 80, 81, 82, 83
sL2E = 84
sC, sG, sWv, sRB, sHP, sROT, sT0, sT3 = 86, 87, 88, 89, 90, 91, 92, 93
sM0 = 94
sD, sSPIN, sOFF, sFL, sGS, sHL = 96, 97, 98, 99, 100, 101

a = Asm()
cap = [None]
KEEP = ('s_cselect', 's_cbranch', 'vcc', 'exec', 's_subb', 'm0', 'v_permlane')


def I(text, tag=None, cond=False):
    if tag and tag.startswith('st') and text.endswith(' lds') and int(tag[2:]) < args.nt:
        text = text[:-4] + f' {args.ntm} lds'
    if cap[0] is None:
        a.I(text, tag, cond)
        return
    if any(k in text for k in KEEP):
        cap[0].append((text, tag))
    else:
        for t in text.split('\n'):
            if t.strip():
                cap[0].append((t.strip(), tag))


def capture(fn):
    cap[0] = []
    fn()
    r, cap[0] = cap[0], None
    return r


def cost(text):
    c = 0
    for t in text.split('\n'):
        t = t.strip()
        if t.startswith('v_mfma'):
            c += 8
        elif t.startswith(('v_exp', 'v_rcp')):
            c += 8
        elif t.startswith('v_'):
            c += 4
        elif t:
            c += 2
    return c


def emit_side(lst, budget):
    while lst:
        t, tag = lst[0]
        if t == 'PAUSE':
            lst.pop(0)
            return
        c = cost(t)
        if c > budget:
            return
        budget -= c
        lst.pop(0)
        a.I(t, tag)


def emit_slots(lst, n):
    while lst:
        t, tag = lst[0]
        c = len([x for x in t.split('\n') if x.strip()]) + (t.count('v_exp') + t.count('v_rcp') + t.count('v_mfma')) + 2 * t.count('v_cndmask')
        if t.startswith('ds_write'):
            c = max(n, 1)
        if c > n and n < 2:
            return
        n -= c
        lst.pop(0)
        a.I(t, tag)
        if n <= 0:
            return


def flush(lst):
    while lst:
        t, tag = lst.pop(0)
        if t != 'PAUSE':
            a.I(t, tag)


nlabel = [0]


def newlabel(p):
    nlabel[0] += 1
    return f'L_{p}{nlabel[0]}'


def stamp(k, grp=''):
    if args.pad and grp == '':
        if k == 0:
            I('s_memrealtime s[36:37]')
        if k == args.padat:
            lb = newlabel('pad')
            a.label(lb)
            I(f's_memrealtime s[38:39]\ns_waitcnt lgkmcnt(0)\ns_sub_u32 s38, s38, s36\ns_cmp_lt_u32 s38, {args.pad}\ns_cbranch_scc1 {lb}')
        return
    if args.dbg != grp and 5 <= k <= 12:
        return
    if args.stamps:
        I(f'{CLK} s[{STAMP_S+2*k}:{STAMP_S+2*k+1}]')


def win(addr):
    return addr >> 16, addr & 0xFFFF


def mfma32(d, A, B, c):
    I(f'v_mfma_f32_32x32x16_bf16 {vr(d,16)}, {vr(A,4)}, {vr(B,4)}, {"0" if c is None else vr(c,16)}')


def mfma16(d, A, B, c):
    I(f'v_mfma_f32_16x16x32_bf16 {vr(d,4)}, {vr(A,4)}, {vr(B,4)}, {"0" if c is None else vr(c,4)}')


def barrier(vm=None, lds=None):
    a.wait(vm=vm, lds=lds)
    I('s_barrier')


def spin(load, check, lds=False):
    top, out = newlabel('spin'), newlabel('spun')
    I(f's_mov_b32 s{sSPIN}, 0')
    a.label(top)
    load()
    if lds:
        a.wait(lds='all')
    else:
        a.wait(vm='all')
    check()
    I(f's_cbranch_vccz {out}')
    I(f's_add_u32 s{sSPIN}, s{sSPIN}, 1\ns_cmp_lt_u32 s{sSPIN}, {args.spin}\ns_cbranch_scc1 {top}')
    a.label(out)


def softmax16(P, T, pk):
    softmax_exp(P, T, pk)
    softmax_sum(P, T, pk)
    softmax_norm(P, T, pk)


def softmax_exp(P, T, pk):
    m0, m1, nm, T0, T1 = T, T + 1, T + 2, T + 4, T + 6
    I(f'v_max3_f32 v{m0}, v{P}, v{P+1}, v{P+2}')
    I(f'v_max3_f32 v{m1}, v{P+3}, v{P+4}, v{P+5}')
    for i, k in enumerate((6, 8, 10, 12, 14)):
        m = m0 if i % 2 == 0 else m1
        I(f'v_max3_f32 v{m}, v{m}, v{P+k}, v{P+k+1}')
    I(f'v_max_f32 v{m0}, v{m0}, v{m1}')
    I(f'v_mul_f32 v{nm}, {NLOG2E:#x}, v{m0}')
    if pk:
        for i in range(8):
            I(f'v_pk_fma_f32 {vr(P+2*i,2)}, {vr(P+2*i,2)}, {sr(sL2E,2)}, {vr(nm,2)} op_sel_hi:[1,0,0]')
            if i >= 1:
                I(f'v_exp_f32 v{P+2*i-2}, v{P+2*i-2}\nv_exp_f32 v{P+2*i-1}, v{P+2*i-1}')
        I(f'v_exp_f32 v{P+14}, v{P+14}\nv_exp_f32 v{P+15}, v{P+15}')
    else:
        for i in range(16):
            I(f'v_fmamk_f32 v{P+i}, v{P+i}, {LOG2E:#x}, v{nm}')
            if i >= 1:
                I(f'v_exp_f32 v{P+i-1}, v{P+i-1}')
        I(f'v_exp_f32 v{P+15}, v{P+15}')


def softmax_sum(P, T, pk, inv=None):
    nm, T0, T1 = T + 2 if inv is None else inv, T + 4, T + 6
    if pk:
        I(f'v_pk_add_f32 {vr(T0,2)}, {vr(P,2)}, {vr(P+2,2)}')
        I(f'v_pk_add_f32 {vr(T1,2)}, {vr(P+4,2)}, {vr(P+6,2)}')
        for i, k in enumerate((8, 10, 12, 14)):
            t = T0 if i % 2 == 0 else T1
            I(f'v_pk_add_f32 {vr(t,2)}, {vr(t,2)}, {vr(P+k,2)}')
        I(f'v_pk_add_f32 {vr(T0,2)}, {vr(T0,2)}, {vr(T1,2)}')
        I(f'v_add_f32 v{T0}, v{T0}, v{T0+1}')
    else:
        for j in range(4):
            I(f'v_add_f32 v{T0+j}, v{P+j}, v{P+4+j}')
        for k in (8, 12):
            for j in range(4):
                I(f'v_add_f32 v{T0+j}, v{T0+j}, v{P+k+j}')
        I(f'v_add_f32 v{T0}, v{T0}, v{T0+1}\nv_add_f32 v{T0+2}, v{T0+2}, v{T0+3}\nv_add_f32 v{T0}, v{T0}, v{T0+2}')
    I(f'v_rcp_f32 v{nm}, v{T0}')


def softmax_norm(P, T, pk, inv=None, mid=None):
    nm = T + 2 if inv is None else inv
    for i in range(8):
        if i == 6 and mid:
            mid()
        if pk:
            I(f'v_pk_mul_f32 {vr(P+2*i,2)}, {vr(P+2*i,2)}, {vr(nm,2)} op_sel_hi:[1,0]')
        else:
            I(f'v_mul_f32 v{P+2*i}, v{P+2*i}, v{nm}\nv_mul_f32 v{P+2*i+1}, v{P+2*i+1}, v{nm}')
        if i >= 1:
            I(f'v_cvt_pk_bf16_f32 v{P+i-1}, v{P+2*i-2}, v{P+2*i-1}')
    I(f'v_cvt_pk_bf16_f32 v{P+7}, v{P+14}, v{P+15}')


def tr_lane_addr(dst, t0, t1):
    I(f'v_lshrrev_b32 v{t0}, 5, v1\nv_bfe_u32 v{t1}, v1, 2, 2\nv_lshl_add_u32 v{t0}, v{t0}, 3, v{t1}\nv_lshlrev_b32 v{dst}, 7, v{t0}')
    I(f'v_bfe_u32 v{t0}, v1, 4, 1\nv_and_b32 v{t1}, 1, v1\nv_lshl_or_b32 v{dst}, v{t0}, 5, v{dst}\nv_lshl_or_b32 v{dst}, v{t1}, 4, v{dst}')
    I(f'v_bfe_u32 v{t0}, v1, 1, 1\nv_bfe_u32 v{t1}, v1, 3, 1\nv_lshl_or_b32 v{dst}, v{t0}, 3, v{dst}\nv_lshl_or_b32 v{dst}, v{t1}, 6, v{dst}')


def w16_addr(dst, t):
    I(f'v_lshrrev_b32 v{t}, 4, v1\nv_bfe_u32 v{t+1}, v1, 2, 2\nv_lshl_add_u32 v{t+1}, v{t}, 3, v{t+1}\nv_lshlrev_b32 v{dst}, 7, v{t+1}')
    I(f'v_and_b32 v{t+1}, 3, v1\nv_lshl_or_b32 v{dst}, v{t+1}, 3, v{dst}\nv_bfe_u32 v{t+1}, v1, 3, 1\nv_lshl_or_b32 v{dst}, v{t+1}, 6, v{dst}')
    I(f'v_and_b32 v{t+1}, 1, v{t}\nv_lshl_or_b32 v{dst}, v{t+1}, 5, v{dst}')


def x16_addr(dst, t, sbase):
    I(f'v_and_b32 v{dst}, 15, v1\nv_lshrrev_b32 v{t}, 4, v1\nv_bfe_u32 v{t+1}, v1, 1, 3\nv_lshlrev_b32 v{dst}, 7, v{dst}')
    I(f'v_xor_b32 v{t}, v{t}, v{t+1}\nv_lshl_or_b32 v{dst}, v{t}, 4, v{dst}\nv_add_u32 v{dst}, s{sbase}, v{dst}\nv_xor_b32 v{dst+1}, 64, v{dst}')
    I(f'v_add_u32 v{dst+2}, 0x10000, v{dst}\nv_add_u32 v{dst+3}, 0x10000, v{dst+1}')


def pack16(src, d):
    for i in range(4):
        I(f'v_cvt_pk_bf16_f32 v{d+i}, v{src+2*i}, v{src+2*i+1}')


def swap16(d):
    I(f'v_permlane16_swap_b32 v{d}, v{d+2}')
    I(f'v_permlane16_swap_b32 v{d+1}, v{d+3}')


def x_read_addrs(dst, t0):
    I(f'v_and_b32 v{dst}, 31, v1\nv_lshrrev_b32 v{t0}, 5, v1\nv_bfe_u32 v{t0+1}, v1, 1, 3\nv_lshlrev_b32 v{dst}, 7, v{dst}')
    I(f'v_xor_b32 v{t0}, v{t0}, v{t0+1}\ns_lshl_b32 s{sT0}, s{sRB}, 12\nv_lshl_or_b32 v{dst}, v{t0}, 4, v{dst}\nv_add_u32 v{dst}, s{sT0}, v{dst}')
    for t in range(1, 4):
        I(f'v_xor_b32 v{dst+t}, {32*t}, v{dst}')


def x_read_addrs_hi(dst):
    for t in range(4):
        I(f'v_add_u32 v{dst+4+t}, 0x10000, v{dst+t}')


ref = open('ref_header.txt').read().split('\n')
for l in ref:
    if l.startswith('; @launch'):
        break
    a.raw(l)
a.raw('; @launch grid=(256,1,1) block=(512,1,1) lds=163840')
a.raw('.amdgcn_target "amdgcn-amd-amdhsa--gfx950"')
a.raw('.text')
a.raw(f'.globl {NAME}_kernel')
a.raw('.p2align 8')
a.raw(f'.type {NAME}_kernel,@function')
a.label(f'{NAME}_kernel')

vXO, vWK, vWV, vWQ, vWoO = 2, 4, 5, 6, 31
have_k = set()


def need_k(i):
    if i in have_k:
        return
    have_k.add(i)
    if i == 0:
        I(f's_lshl_b32 s{sK}, s{sROT}, 7')
    else:
        assert i - 1 in have_k
        NL = args.nlock
        if args.rot == 5 and i == NL:
            I(f's_lshr_b32 s{sROT}, s2, 6\ns_bfe_u32 s{sK}, s2, 0x30003\ns_lshl1_add_u32 s{sROT}, s{sROT}, s{sK}')
            for _ in range(1 if NL == 1 else 2):
                I(f's_cmp_ge_u32 s{sROT}, {8-NL}\ns_cselect_b32 s{sK}, {8-NL}, 0\ns_sub_u32 s{sROT}, s{sROT}, s{sK}')
            I(f's_add_u32 s{sK}, s{sROT}, {NL}\ns_lshl_b32 s{sK}, s{sK}, 7')
        elif args.rot == 5:
            I(f's_add_u32 s{sK}, s{sK}, 128\ns_cmp_eq_u32 s{sK}, 1024\ns_cselect_b32 s{sK}, {128*NL}, s{sK}')
        else:
            I(f's_add_u32 s{sK}, s{sK}, 128\ns_and_b32 s{sK}, s{sK}, 1023')
    I(f's_mul_i32 s{sW+i}, s{sK}, 1536')


def prologue():
    I(f'v_bfe_u32 v8, v0, 3, 3\ns_and_b32 s{sC}, s2, 1')
    I(f's_lshl3_add_u32 s{sC}, s{sC}, s{sT1}\nv_and_b32 v9, 7, v0\ns_lshr_b32 s{sT0}, s{sC}, 1\nv_bfe_u32 v10, v0, 4, 2')
    I(f's_lshl_b32 s{sT0}, s{sT0}, 8\nv_lshl_add_u32 v11, v7, 4, v8\ns_and_b32 s{sT2}, s{sC}, 1\nv_xor_b32 v12, v9, v10\ns_or_b32 s{sT0}, s{sT0}, s{sT2}\nv_lshlrev_b32 v11, 11, v11')
    I(f's_lshl_b32 s{sOFF}, s{sT0}, 10\nv_lshl_or_b32 v11, v12, 4, v11\ns_mov_b32 s{S_X+3}, 0x20000\nv_add_u32 v{vXO}, s{sOFF}, v11\ns_lshl_b32 s{S_X+2}, s{S_X+3}, 4')
    I(f's_lshl_b32 s{sLX}, s{sWv}, 11\nv_xor_b32 v{vXO+1}, 64, v{vXO}\ns_lshr_b32 s{sT2}, s2, 6\nv_add_u32 v{vXO+1}, 0x4000, v{vXO+1}')
    if args.rot in (0, 5):
        I(f's_mov_b32 s{sROT}, 0')
    elif args.rot == 1:
        I(f's_lshl1_add_u32 s{sROT}, s{sT2}, s{sT1}\ns_and_b32 s{sROT}, s{sROT}, 7')
    elif args.rot >= 200000:
        d = [int(c) for c in str(args.rot)[1:]]
        I(f's_lshl_b32 s{sROT}, s{sT2}, 2\ns_lshr_b32 s{sROT}, {d[0] | d[1] << 4 | d[2] << 8 | d[3] << 12}, s{sROT}\ns_add_u32 s{sROT}, s{sROT}, s{sT1}')
        if d[4]:
            I(f's_and_b32 s{sK}, s2, 6\ns_add_u32 s{sROT}, s{sROT}, s{sK}')
        I(f's_and_b32 s{sROT}, s{sROT}, 7')
    elif args.rot >= 10:
        d = [int(c) for c in str(args.rot)[1:]]
        I(f's_lshl_b32 s{sROT}, s{sT2}, 2\ns_lshr_b32 s{sROT}, {d[0] | d[1] << 4 | d[2] << 8 | d[3] << 12}, s{sROT}\ns_and_b32 s{sROT}, s{sROT}, 7')
    elif args.rot == 6:
        I(f's_and_b32 s{sROT}, s{sT1}, 1\ns_lshl1_add_u32 s{sROT}, s{sT2}, s{sROT}')
    elif args.rot == 7:
        I(f's_and_b32 s{sROT}, s2, 7\ns_lshl1_add_u32 s{sROT}, s{sT2}, s{sROT}\ns_and_b32 s{sROT}, s{sROT}, 7')
    elif args.rot == 2:
        I(f's_xor_b32 s{sROT}, s{sT2}, s{sT1}\ns_and_b32 s{sROT}, s{sROT}, 1\ns_lshl_b32 s{sROT}, s{sROT}, 2')
    elif args.rot == 3:
        I(f's_add_u32 s{sROT}, s{sT2}, s{sT1}\ns_and_b32 s{sROT}, s{sROT}, 3\ns_lshl_b32 s{sROT}, s{sROT}, 1')
    I(f's_lshl_b32 s{sK}, s{sROT}, 7')


def prologue_w(role):
    have_k.clear()
    have_k.add(0)
    if args.xr:
        I(f's_and_b32 s{sG}, s2, 2\nv_lshrrev_b32 v13, 3, v0\ns_lshr_b32 s{sT2}, s2, 6\nv_and_b32 v12, 16, v0\ns_lshl1_add_u32 s{sG}, s{sG}, s{sT2}\ns_mul_i32 s{sW}, s{sK}, 1536')
    else:
        I(f's_and_b32 s{sG}, s2, 6\nv_lshrrev_b32 v13, 3, v0\ns_bfe_u32 s{sT2}, s2, 0x10006\nv_and_b32 v12, 16, v0\ns_or_b32 s{sG}, s{sG}, s{sT2}\ns_mul_i32 s{sW}, s{sK}, 1536')
    I(f's_mov_b64 s[{S_W}:{S_W+1}], s[{(S_WOA, S_WOB)[role]}:{(S_WOA, S_WOB)[role]+1}]')
    I(f'v_lshlrev_b32 v9, 4, v9\ns_lshl_b32 s{sT2}, s{sG}, 7\nv_lshlrev_b32 v12, 2, v12\ns_mov_b32 s{S_W+3}, s{S_X+3}\nv_xor_b32 v12, v12, v9')
    I(f'v_mul_u32_u24 v14, 3072, v13\ns_mov_b32 s{S_W+2}, 1572864\nv_add3_u32 v{vWQ}, v14, v12, s{sT2}\ns_lshl_b32 s{sLW}, s{sWv}, 10\nv_add_u32 v{vWK}, 1024, v{vWQ}')


def prologue_rest(role):
    I(f's_load_dwordx2 s[{S_MISC}:{S_MISC+1}], s[0:1], {16 if role == 0 else 56}')
    I(f's_load_dwordx2 s[{S_WS}:{S_WS+1}], s[0:1], 80')
    I(f's_load_dwordx2 s[{S_WOA}:{S_WOA+1}], s[0:1], 24')
    I(f's_load_dwordx2 s[{S_WOB}:{S_WOB+1}], s[0:1], 48')
    I(f's_load_dwordx2 s[{S_OUT}:{S_OUT+1}], s[0:1], 64')
    I(f's_load_dwordx2 s[{S_DBG}:{S_DBG+1}], s[0:1], 72')
    I(f'v_and_b32 v1, 63, v0\nv_add_u32 v{vWV}, 2048, v{vWQ}\ns_lshl_b32 s{sT2}, s{sT1}, 7\nv_lshl_add_u32 v{vWoO}, v13, 10, v12')
    I(f's_and_b32 s{sRB}, s{sWv}, 1\nv_add_u32 v{vWoO}, s{sT2}, v{vWoO}\ns_lshl_b32 s{sRB}, s{sRB}, 5\nv_xor_b32 v{vWoO}, s{sRB}, v{vWoO}')
    I(f's_and_b32 s{sRB}, s{sWv}, 3\ns_lshr_b32 s{sHP}, s{sWv}, 2')
    if args.stamps:
        for k in range(1, NST):
            if not (args.dbg == 's' and k in (5, 6)):
                I(f's_mov_b32 s{STAMP_S+2*k}, 0')


def srd_tail(base, nrec):
    I(f's_mov_b32 s{base+2}, {nrec}\ns_mov_b32 s{base+3}, 0x20000')


def late_scalars():
    srd_tail(S_WOA, 524288)
    srd_tail(S_WOB, 524288)
    srd_tail(S_OUT, 2097152)
    I(f's_mov_b32 s{sL2E}, {LOG2E:#x}\ns_mov_b32 s{sL2E+1}, {LOG2E:#x}\ns_mov_b32 s{S_DBG+3}, 1')


def dma_x1(i, addr, tag, q):
    need_k(i)
    I(f's_add_u32 m0, s{sLX}, {addr+1024*q}')
    I(f'buffer_load_dwordx4 v{vXO+q}, {sr(S_X,4)}, s{sK} offen lds', tag)


def dma_w(voff, i, addr, tag):
    need_k(i)
    I(f's_add_u32 m0, s{sLW}, {addr}')
    I(f'buffer_load_dwordx4 v{voff}, {sr(S_W,4)}, s{sW+i} offen lds', tag)


WMAP = {'B': [0, 1, 2, 3, 4, 5, 8, 9], 'A': [10, 11, 12, 13, 14, 15, 16, 17]}


def dma_wo(br, g):
    blk = WMAP[br][g]
    I(f's_add_u32 m0, s{sLW}, {blk*BLK}')
    I(f's_mov_b32 s{sD}, {g*65536}')
    I(f'buffer_load_dwordx4 v{vWoO}, {sr(S_WOA if br == "A" else S_WOB,4)}, s{sD} offen lds', 'wo')


sPV, sONE = S_DBG + 2, S_DBG + 3


def sspin(issue, want, first=True):
    top, chk, out = newlabel('sp'), newlabel('sc'), newlabel('so')
    I(f's_mov_b32 s{sSPIN}, 0')
    if not first:
        I(f's_branch {chk}')
    a.label(top)
    issue()
    a.label(chk)
    a.wait(lds='all')
    I(f's_cmp_ge_u32 s{sPV}, {want}\ns_cbranch_scc1 {out}')
    if args.psleep:
        I(f's_sleep {args.psleep}')
    I(f's_add_u32 s{sSPIN}, s{sSPIN}, 1\ns_cmp_lt_u32 s{sSPIN}, {args.spin}\ns_cbranch_scc1 {top}')
    a.label(out)


def ready_issue():
    I(f's_load_dword s{sPV}, s[{S_DBG}:{S_DBG+1}], 0x0')


def ready_check(v):
    ok = newlabel('rdy')
    a.wait(lds='all')
    I(f's_cmp_ge_u32 s{sPV}, 1\ns_cbranch_scc1 {ok}')
    q = list(a.vmq)
    spin(lambda: I(f'v_mov_b32 v{v}, 0\nglobal_load_dword v{v}, v{v}, s[{S_DBG}:{S_DBG+1}] sc1'), lambda: I(f'v_cmp_eq_u32 vcc, 0, v{v}'))
    a.vmq = q
    a.label(ok)


def signal(soff):
    I(f's_atomic_add s{sONE}, s[{S_WS}:{S_WS+1}], s{soff}')


def count_issue(soff):
    I(f's_mov_b32 s{sPV}, 0')
    I(f's_atomic_or s{sPV}, s[{S_WS}:{S_WS+1}], s{soff} glc')


def o_addrs(vos, obase, fbase):
    I(f's_lshl_b32 s{sT0}, s{sC}, 2\ns_add_u32 s{sT0}, s{sT0}, s{sRB}\ns_lshl_b32 s{sT1}, s{sG}, 1\ns_add_u32 s{sT1}, s{sT1}, s{sHP}')
    I(f's_mul_i32 s{sT2}, s{sT0}, {OSTR}\ns_lshl_b32 s{sT3}, s{sT1}, 11\ns_add_u32 s{sT2}, s{sT2}, s{sT3}')
    if obase:
        I(f's_add_u32 s{sT2}, s{sT2}, {obase}')
    I(f'v_lshlrev_b32 v{vos}, 4, v1\nv_add_u32 v{vos}, s{sT2}, v{vos}')
    I(f's_lshl_b32 s{sT0}, s{sT0}, 8\ns_lshr_b32 s{sT2}, s{sG}, 2\ns_lshl_b32 s{sT2}, s{sT2}, 7\ns_add_u32 s{sT0}, s{sT0}, s{sT2}\ns_add_u32 s{sFL}, s{sT0}, {fbase}')


MISC = 19 * BLK
KVS = MISC
WOF, OF, ACC = 128, 32, 96
PREG = dict(pWR=2, pOL=6, pGL=19, pXW=20, pXR=21, pOUT=22, pLF=23)
pWR, pOL, pGL, pXW, pXR, pOUT, pLF = PREG.values()
pF, pG, pT, pE = 26, 16, 8, 27
sPW1, sPW2, sPO, sPG, sPOUT, sPF, sPK, sBR = sK + 1, sK + 2, sK + 3, sK + 4, sK + 5, sK + 6, sK + 7, 3
XA, XB, XL = 6 * BLK, 0, MISC + 5632
XBASE = 0
XGO = 1024


def p2_scalars(br):
    sC2, sRB2, sKH = sM0, sM0 + 1, sPK
    m = WMAP[br]
    I(f's_and_b32 s{sC2}, s2, 7\ns_lshr_b32 s{sT0}, s2, 7\ns_lshl1_add_u32 s{sC2}, s{sC2}, s{sT0}')
    I(f's_bfe_u32 s{sRB2}, s2, 0x10006\ns_bfe_u32 s{sT0}, s{sWv}, 0x10001\ns_lshl1_add_u32 s{sRB2}, s{sRB2}, s{sT0}')
    I(f's_and_b32 s{sKH}, s{sWv}, 1\ns_mov_b32 s{sBR}, {"AB".index(br)}')
    I(f's_mul_i32 s{sPW1}, s{sKH}, {(m[4]-m[0])*BLK}\ns_add_u32 s{sPW1}, s{sPW1}, {m[0]*BLK}\ns_mul_i32 s{sPW2}, s{sKH}, {(m[6]-m[2])*BLK}\ns_add_u32 s{sPW2}, s{sPW2}, {m[2]*BLK}')
    I(f's_mov_b32 s{sT2}, {OA if br == "A" else OB}')
    if args.orot:
        I(f's_mov_b32 s{sT0}, s{sPW1}')
        I(f's_bitcmp1_b32 s2, 3\ns_cselect_b32 s{sPW1}, s{sPW2}, s{sPW1}\ns_cselect_b32 s{sPW2}, s{sT0}, s{sPW2}')
    I(f's_lshl_b32 s{sT0}, s{sC2}, 2\ns_add_u32 s{sT0}, s{sT0}, s{sRB2}\ns_mul_i32 s{sT1}, s{sT0}, {OSTR}\ns_add_u32 s{sT2}, s{sT2}, s{sT1}')
    I(f's_lshl_b32 s{sT1}, s{sKH}, 14\ns_add_u32 s{sPO}, s{sT2}, s{sT1}')
    I(f's_lshl_b32 s{sT0}, s{sT0}, 8\ns_lshl_b32 s{sT1}, s{sBR}, 14\ns_add_u32 s{sT0}, s{sT0}, s{sT1}\ns_lshl_b32 s{sT1}, s{sKH}, 7\ns_add_u32 s{sT0}, s{sT0}, s{sT1}\ns_add_u32 s{sPF}, s{sT0}, {FA}')
    I(f's_lshl_b32 s{sT0}, s{sC2}, 1\ns_add_u32 s{sT0}, s{sT0}, s{sKH}\ns_lshl_b32 s{sT0}, s{sT0}, 11\ns_lshl_b32 s{sT1}, s{sRB2}, 7\ns_add_u32 s{sT0}, s{sT0}, s{sT1}\ns_add_u32 s{sPG}, s{sT0}, {GP}')
    I(f's_lshr_b32 s{sT0}, s{sC2}, 1\ns_lshl_b32 s{sT0}, s{sT0}, 8\ns_and_b32 s{sT1}, s{sC2}, 1\ns_or_b32 s{sT0}, s{sT0}, s{sT1}\ns_lshl_b32 s{sT1}, s{sRB2}, 6\ns_add_u32 s{sT0}, s{sT0}, s{sT1}\ns_lshl_b32 s{sT0}, s{sT0}, 10')
    I(f's_bfe_u32 s{sT1}, s2, 0x30003\ns_lshl_b32 s{sT1}, s{sT1}, 7\ns_add_u32 s{sT0}, s{sT0}, s{sT1}\ns_lshl_b32 s{sT1}, s{sKH}, 15\ns_add_u32 s{sPOUT}, s{sT0}, s{sT1}')
    I(f's_lshl_b32 s{sT1}, s{sKH}, 8\ns_add_u32 s{sPO}, s{sPO}, s{sT1}\ns_sub_u32 s{sPW2}, s{sPW2}, s{sPW1}\ns_lshl_b32 s{sPK}, s{sKH}, 6')
    I(f's_and_b32 s{sT0}, s{sWv}, 3\ns_lshl_b32 s{sM0}, s{sT0}, 12\ns_add_u32 s{sM0}, s{sM0}, {XBASE}\ns_lshl_b32 s{sT0}, s{sT0}, 8\ns_add_u32 s{sM0+1}, s{sT0}, {XL}')


def p2_setup(t, trp, R=PREG):
    pWR, pOL, pGL, pXW, pXR, pOUT, pLF = R.values()
    assert XL % 512 == 0 and OSTR % 512 == 0
    I(f'v_add_u32 v{pWR}, s{sPW1}, v{trp}\nv_xor_b32 v{pWR+1}, 32, v{pWR}\nv_xor_b32 v{pWR+2}, 64, v{pWR}\nv_xor_b32 v{pWR+3}, 0x60, v{pWR}')
    I(f'v_lshlrev_b32 v{t}, 4, v1\nv_add_u32 v{pXR}, s{sM0}, v{t}\nv_xor_b32 v{pXW}, 0x1000, v{pXR}')
    I(f'v_lshlrev_b32 v{t}, 2, v1\nv_add_u32 v{pLF}, s{sM0+1}, v{t}\nv_xor_b32 v{pLF+1}, 0x100, v{pLF}\nv_mov_b32 v{t+1}, -1')
    I(f'ds_write_b32 v{pLF}, v{t+1}', 'side')
    I(f'v_and_b32 v{pOUT}, 15, v1\nv_lshrrev_b32 v{t}, 4, v1\nv_lshlrev_b32 v{pGL}, 9, v{t}')
    I(f'v_lshl_or_b32 v{pOL}, v{pOUT}, 4, v{pGL}\nv_add_u32 v{pOL}, s{sPO}, v{pOL}\nv_xor_b32 v{pOL+1}, 0x100, v{pOL}')
    I(f'v_lshl_or_b32 v{pGL}, v{pOUT}, 2, v{pGL}\nv_or_b32 v{pGL}, s{sPK}, v{pGL}')
    I(f'v_lshlrev_b32 v{pOUT}, 11, v{pOUT}\nv_and_b32 v{t}, 1, v{t}\nv_lshl_or_b32 v{pOUT}, v{t}, 5, v{pOUT}\nv_lshrrev_b32 v{t}, 5, v1\nv_lshl_or_b32 v{pOUT}, v{t}, 4, v{pOUT}')


def wo_half(br, g, q, up, tag):
    blk = WMAP[br][g]
    sg_ = -1 if up else 1
    I(f's_add_u32 m0, s{sLW}, {blk*BLK+sg_*4096*q}' if blk * BLK + sg_ * 4096 * q >= 0 else f's_sub_u32 m0, s{sLW}, 4096')
    if up and q:
        I(f's_mov_b32 s{sD}, {g*65536}')
        I(f'buffer_load_dwordx4 v{vWo2}, {sr(S_WOA if br == "A" else S_WOB,4)}, s{sD} offen lds', tag)
    else:
        I(f's_mov_b32 s{sD}, {g*65536+32768*q}')
        I(f'buffer_load_dwordx4 v{vWoO}, {sr(S_WOA if br == "A" else S_WOB,4)}, s{sD} offen lds', tag)


vWo2 = 29


def page_touch(dst):
    skip = newlabel('notw')
    I(f's_cmp_eq_u32 s{sWv}, 6\ns_cbranch_scc0 {skip}')
    I('s_mov_b64 exec, 1')
    if 'w' in args.tw:
        I(f's_add_u32 s{sT0}, s{sPO}, {32768+4096}\ns_add_u32 s{sT1}, s{sT0}, {OB-OA}\ns_mov_b32 s{sT2}, {WS_USED+8192}')
        for r in (sT0, sT1, sT2):
            I(f'buffer_load_dword v{dst}, off, {sr(S_WS,4)}, s{r}', cond=True)
    if 'o' in args.tw:
        I(f'buffer_load_dword v{dst}, off, {sr(S_OUT,4)}, s{sPOUT}', cond=True)
    if 'p' in args.tw:
        I(f'buffer_load_dword v{dst}, off, {sr(S_WOA,4)}, 0', cond=True)
        I(f'buffer_load_dword v{dst}, off, {sr(S_WOB,4)}, 0', cond=True)
    I('s_mov_b64 exec, -1')
    a.label(skip)


def wo_frags():
    for n in range(8):
        for c in range(4):
            if n == 4:
                I(f'v_add_u32 v{pWR+c}, s{sPW2}, v{pWR+c}')
            for u in range(2):
                I(f'ds_read_b64_tr_b16 {vr(WOF+16*n+4*c+2*u,2)}, v{pWR+c} offset:{(n&3)*4096+u*512}', 'wf')


def checked(v, tag, load, test):
    ok = newlabel('ok')
    a.wait(vm=tag)
    test()
    I(f's_cbranch_vccz {ok}')
    q = list(a.vmq)
    spin(load, test)
    a.vmq = q
    a.label(ok)


vXO2 = 32
ROLE = {0: 's_cmpk_ge_u32 s2, 128', 1: 's_bitcmp1_b32 s2, 2', 2: 's_bitcmp0_b32 s2, 2'}[args.xr]
CLR = {0: 128, 1: 6, 2: 0}[args.xr] + 7 * 256
I(f's_load_dwordx2 s[{S_X}:{S_X+1}], s[0:1], 0')
I(f's_load_dwordx2 s[{S_WOA}:{S_WOA+1}], s[0:1], 8')
I(f's_load_dwordx2 s[{S_WOB}:{S_WOB+1}], s[0:1], 40')
stamp(0)
I(f'v_lshrrev_b32 v7, 6, v0\ns_cmpk_ge_u32 s2, 256\ns_cbranch_scc1 L_end')
I(f'v_readfirstlane_b32 s{sWv}, v7\ns_bfe_u32 s{sT1}, s2, 0x30003')
if not args.lin:
    I(f's_cmp_eq_u32 s{sWv}, 4\ns_cbranch_scc0 L_top')
    I(f's_getpc_b64 s[{sM0}:{sM0+1}]\ns_mul_i32 s{sT0}, s{sT1}, 48\nv_and_b32 v254, 63, v0\nv_min_u32 v254, 47, v254\nv_add_lshl_u32 v254, v254, s{sT0}, 7')
    I(f'global_load_dword v255, v254, s[{sM0}:{sM0+1}]', cond=True)
else:
    last = 6 if 'x' in args.lin else 5
    I(f's_sub_u32 s{sT2}, s{sWv}, 4\ns_cmp_gt_u32 s{sT2}, {last-4}\ns_cbranch_scc1 L_top')
    I(f's_getpc_b64 s[{sM0}:{sM0+1}]\nv_and_b32 v254, 63, v0\ns_cmp_eq_u32 s{sT2}, 0\ns_cselect_b32 s{sT0}, s{sT1}, s2\ns_cbranch_scc1 L_t1')
    I(f's_waitcnt lgkmcnt(0)\ns_mov_b64 s[{sM0}:{sM0+1}], s[{S_WOA}:{S_WOA+1}]')
    if 'x' in args.lin:
        I(f's_cmp_eq_u32 s{sT2}, 1\ns_cbranch_scc1 L_t1')
        I(f's_lshl_b32 s{sT0}, s2, 6\ns_mov_b64 s[{sM0}:{sM0+1}], s[{S_X}:{S_X+1}]\ns_branch L_t2')
    a.label('L_t1')
    I(f's_mul_i32 s{sT0}, s{sT0}, 48\nv_min_u32 v254, 47, v254')
    a.label('L_t2')
    I(f'v_add_lshl_u32 v254, v254, s{sT0}, 7')
    I(f'global_load_dword v255, v254, s[{sM0}:{sM0+1}]', cond=True)
a.label('L_top')
prologue()
if not args.upj:
    I(f's_cmp_ge_u32 s{sWv}, 4\ns_cbranch_scc1 L_upper')
I(f's_mov_b32 m0, s{sLX}\ns_waitcnt lgkmcnt(0)')
stamp(5, 's')
I(f'buffer_load_dwordx4 v{vXO}, {sr(S_X,4)}, s{sK} offen lds', 'st0')
I(f's_addk_i32 m0, 0x400\nv_add_u32 v{vXO2}, s{S_X+3}, v{vXO}')
I(f'buffer_load_dwordx4 v{vXO+1}, {sr(S_X,4)}, s{sK} offen lds', 'st0')
I(f's_addk_i32 m0, 0x1c00\nv_add_u32 v{vXO2+1}, s{S_X+3}, v{vXO+1}')
I(f'buffer_load_dwordx4 v{vXO2}, {sr(S_X,4)}, s{sK} offen lds', 'st0')
I(f's_addk_i32 m0, 0x400\n{ROLE}')
I(f'buffer_load_dwordx4 v{vXO2+1}, {sr(S_X,4)}, s{sK} offen lds', 'st0')
I('s_cbranch_scc1 L_roleB\ns_branch L_roleA')
topq = list(a.vmq)
a.label('L_upper')
I(f'{ROLE}\ns_cbranch_scc1 L_bcomp\ns_branch L_acomp')

SLOT = lambda s: (s % 4) * 4 * BLK
QBLK = [16, 17, 18, 6, 7, 13, 14, 15]
PHI, VIM = 0, 4 * BLK
PARK = dict(pWR=240, pOL=244, pGL=246, pXW=247, pXR=248, pOUT=249, pLF=250)
NH = args.nh
NPRE = args.npre


def prio(p):
    if args.prio:
        I(f's_setprio {p}')


def stream(lst, events):
    tot = sum(cost(t) for t, _ in lst)
    events = sorted(events, key=lambda e: e[0])
    done = 0
    for t, tag in lst:
        while events and done >= events[0][0] * tot:
            events.pop(0)[1]()
        a.I(t, tag)
        done += cost(t)
    while events:
        events.pop(0)[1]()


def o_load(k):
    n = k & 7
    I(f'buffer_load_dwordx4 {vr(OF+4*k,4)}, v{pOL+(k<8)}, {sr(S_WS,4)}, s{sW+(n>>1)} offen offset:{(n&1)*2048} sc1', f'o{k}')


def p2_consts():
    if args.orot:
        I(f's_and_b32 s{sW}, s2, 8\ns_lshl_b32 s{sW}, s{sW}, 10')
    else:
        I(f's_mov_b32 s{sW}, 0')
    for q in range(1, 4):
        I(f's_xor_b32 s{sW+q}, s{sW}, {q*4096}')


def gate_loads():
    I(f'v_xor_b32 v{pG+1}, 64, v{pGL}')
    I(f'buffer_load_dword v{pG}, v{pGL}, {sr(S_WS,4)}, s{sPG} offen sc1', 'gl', cond=True)
    I(f'buffer_load_dword v{pG+1}, v{pG+1}, {sr(S_WS,4)}, s{sPG} offen sc1', 'gl', cond=True)


def unpark():
    for nm, r in PREG.items():
        for i in range({'pWR': 4, 'pLF': 2, 'pOL': 2}.get(nm, 1)):
            I(f'v_mov_b32 v{r+i}, v{PARK[nm]+i}')


wof = lambda x: (lambda: dma_wo(*x))
spread = lambda fs, lo=0.0, hi=1.0: [(lo + (hi - lo) * i / len(fs), f) for i, f in enumerate(fs)]
halves = lambda lst, up, tag: [(lambda br, g, q: (lambda: wo_half(br, g, q, up, tag)))(br, g, q) for br, g in lst for q in range(2)]
issued = lambda tag: any(t_ == tag for t_, _ in a.vmq)


def wphi_addr(dst, sg, t):
    I(f'v_lshrrev_b32 v{t}, 5, v1\nv_bfe_u32 v{t+1}, v1, 2, 2\nv_lshl_add_u32 v{t}, v{t}, 3, v{t+1}\nv_lshlrev_b32 v{dst}, 5, v{t}')
    I(f'v_bfe_u32 v{t}, v1, 4, 1\nv_lshl_or_b32 v{dst}, v{t}, 4, v{dst}\nv_bfe_u32 v{t}, v1, 1, 1\nv_lshl_or_b32 v{dst}, v{t}, 3, v{dst}')
    I(f'v_add_u32 v{dst}, {MISC}, v{dst}')
    I(f'v_bfe_u32 v{t}, v1, 2, 1\nv_mul_u32_u24 v{sg}, 0x8000, v{t}\nv_lshl_or_b32 v{sg}, v{sg}, 16, v{sg}')


def phi_addr(dst, hand, t):
    I(f'v_and_b32 v{t}, 31, v1\nv_lshrrev_b32 v{t+1}, 5, v1\nv_lshlrev_b32 v{t+1}, 1, v{t+1}\nv_bfe_u32 v{dst+1}, v1, 1, 2\nv_xor_b32 v{t+1}, v{t+1}, v{dst+1}')
    I(f'v_lshlrev_b32 v{dst}, 6, v{t}\nv_lshl_or_b32 v{dst}, v{t+1}, 4, v{dst}\ns_lshl_b32 s{sT0}, s{sRB}, 11\nv_add_u32 v{dst}, s{sT0}, v{dst}\nv_xor_b32 v{dst+1}, 16, v{dst}')
    I(f'v_lshlrev_b32 v{hand}, 4, v1\nv_add_u32 v{hand}, s{sT0}, v{hand}')


def kv_store_addr(vks, vzs, t):
    I(f's_lshl_b32 s{sT0}, s{sG}, 4\ns_add_u32 s{sT0}, s{sT0}, s{sC}\ns_mul_i32 s{sT0}, s{sT0}, {KSTR}\ns_add_u32 s{sT0}, s{sT0}, {KVP}')
    I(f's_mul_i32 s{sT1}, s{sRB}, 1152\ns_add_u32 s{sT0}, s{sT0}, s{sT1}\nv_lshlrev_b32 v{vks}, 4, v1\nv_add_u32 v{vks}, s{sT0}, v{vks}')
    I(f'v_add_u32 v{vzs}, s{sT0}, v1\nv_and_b32 v{t}, 15, v1\nv_mov_b32 v{t+1}, {OOB:#x}')
    I(f'v_cmp_eq_u32 vcc, 0, v{t}\nv_cndmask_b32 v{vzs}, v{t+1}, v{vzs}, vcc')


vKR, vOS = 28, 0
PQ, KVF, NUM = (64, 80), 32, 96


def join_addr(t):
    I(f'v_and_b32 v{t}, 3, v1\nv_bfe_u32 v{t+1}, v1, 2, 1\nv_lshl_or_b32 v{t}, v{t+1}, 3, v{t}')
    I(f'v_bfe_u32 v{t+1}, v1, 3, 1\nv_lshl_or_b32 v{t}, v{t+1}, 2, v{t}')
    I(f'v_and_b32 v{t+1}, 16, v1\nv_or_b32 v{t}, v{t}, v{t+1}\nv_min_u32 v{t}, 16, v{t}')
    I(f'v_mul_u32_u24 v{vKR}, 80, v{t}\nv_and_b32 v{t+1}, 32, v1\nv_add_u32 v{vKR}, v{vKR}, v{t+1}')
    I(f's_mul_i32 s{sT0}, s{sHP}, 2720\ns_add_u32 s{sT0}, s{sT0}, {KVS}\nv_add_u32 v{vKR}, s{sT0}, v{vKR}')
    o_addrs(vOS, OA, FA)


def lds_write(text):
    if args.wprio:
        cap[0].append((f's_setprio 3\n{text}\ns_setprio 0', 'side'))
    else:
        I(text, 'side')


def phi_k(h, P, T, vpw):
    w1 = lambda e: I(f'ds_write_b128 v{vpw+e}, {vr(P+4*e,4)} offset:{PHI+h*8192}', 'side')
    softmax_exp(P, T, args.kpk)
    softmax_sum(P, T, args.kpk)
    softmax_norm(P, T, args.kpk, mid=lambda: w1(0))
    w1(1)


a.label('L_roleA')
a.vmq = list(topq)

hXO2, hWO2 = vXO2, 10
hPW, hHD, hPR, hVR, hKS, hZS, hWP, hSG, hPL, hZL, hKW, hZW = 148, 150, 151, 153, 154, 155, 156, 157, 25, 27, 28, 29
HP, HW, HK, HT, SEL0, ONES = 32, 96, 112, 128, 136, 144
SEL = 8
PART, ZP, DS_, MARK, hWX = 32, 96, 112, 228, 26
WEARLY = [('B', 6), ('B', 7), ('A', 0), ('A', 1), ('A', 2)]


def a_dx(s, q):
    need_k(s)
    I(f's_add_u32 m0, s{sLX}, {SLOT(s)+1024*(q&1)+8192*(q>>1)}')
    I(f'buffer_load_dwordx4 v{(vXO, vXO+1, hXO2, hXO2+1)[q]}, {sr(S_X,4)}, s{sK} offen lds', f'st{s}')


def a_dw(j, i, addr, q, tag):
    I(f's_add_u32 m0, s{sLW}, {addr+4096*q-1024*j}')
    I(f'buffer_load_dwordx4 v{(vWQ, hWO2)[q]}, {sr(S_W,4)}, s{sW+i} offen offset:{1024*j} lds', tag)


def a_stage(s):
    return [(lambda q: (lambda: a_dx(s, q)))(q) for q in range(4)] + [(lambda j, q: (lambda: a_dw(j, s, SLOT(s) + (1 + j) * BLK, q, f'st{s}')))(j, q) for j in (1, 2) for q in range(2)]


qdma = lambda i: [(lambda q: (lambda: a_dw(0, i, QBLK[i] * BLK, q, f'q{i}')))(q) for q in range(2)]
prologue_w(0)
I(f's_and_b32 s{sT2}, s{sWv}, 1\ns_lshl_b32 s{sT2}, s{sT2}, 5\nv_xor_b32 v{vWQ}, s{sT2}, v{vWQ}')
I(f'v_add_u32 v{hWO2}, {32*3072}, v{vWQ}')
for f in a_stage(0)[4:]:
    f()
stamp(6, 's')
for f in a_stage(1):
    f()
prologue_rest(0)
stamp(7, 's')


def h_setup():
    srd_tail(S_WS, WS_REC)
    late_scalars()
    wphi_addr(hWP, hSG, HT)
    phi_addr(hPW, hHD, HT)
    I(f'v_lshrrev_b32 v{HT}, 5, v1\nv_bfe_u32 v{HT+1}, v1, 2, 3\nv_lshl_add_u32 v{HT}, v{HT}, 4, v{HT+1}')
    I(f'v_bfe_u32 v{HT+1}, v1, 1, 1\nv_bfe_u32 v{HT+2}, v1, 3, 2\nv_xor_b32 v{HT+1}, v{HT+1}, v{HT+2}')
    I(f'v_lshlrev_b32 v{hPR}, 6, v{HT}\nv_lshl_or_b32 v{hPR}, v{HT+1}, 4, v{hPR}')
    I(f'v_and_b32 v{HT+1}, 1, v1\nv_lshl_or_b32 v{hPR}, v{HT+1}, 3, v{hPR}')
    I(f's_lshl_b32 s{sT0}, s{sRB}, 13\nv_add_u32 v{hPR}, s{sT0}, v{hPR}\nv_xor_b32 v{hPR+1}, 32, v{hPR}')
    I(f'v_bfe_u32 v{HT}, v1, 2, 3\nv_lshlrev_b32 v{hVR}, 6, v{HT}\nv_and_b32 v{HT+1}, 3, v1\nv_xor_b32 v{HT+1}, v{HT+1}, v{HT+2}\nv_lshl_or_b32 v{hVR}, v{HT+1}, 4, v{hVR}')
    I(f'v_lshrrev_b32 v{HT+1}, 5, v1\nv_lshl_or_b32 v{hVR}, v{HT+1}, 3, v{hVR}')
    I(f's_lshl_b32 s{sT0}, s{sRB}, 12\ns_add_u32 s{sT0}, s{sT0}, {VIM}\nv_add_u32 v{hVR}, s{sT0}, v{hVR}')
    kv_store_addr(hKS, hZS, HT)
    I(f's_lshl_b32 s{sT1}, s{sG}, 2\ns_add_u32 s{sT0}, s{sT1}, s{sRB}\ns_lshl_b32 s{sT0}, s{sT0}, 7\ns_add_u32 s{sHL}, s{sT0}, {FK}\ns_add_u32 s{sOFF}, s{sHL}, 64')
    I(f's_mul_i32 s{sT0}, s{sG}, {16*KSTR}\ns_mul_i32 s{sT1}, s{sRB}, 1152\ns_add_u32 s{sT0}, s{sT0}, s{sT1}\ns_add_u32 s{sT0}, s{sT0}, {KVP}')
    I(f'v_lshrrev_b32 v{HT}, 4, v1\nv_and_b32 v{HT+1}, 15, v1\nv_mul_u32_u24 v{hZL}, {KSTR}, v{HT}\nv_add_u32 v{hZL}, s{sT0}, v{hZL}')
    I(f'v_lshl_add_u32 v{hPL}, v{HT+1}, 4, v{hZL}\nv_and_b32 v{HT+3}, 3, v1\nv_lshl_add_u32 v{hZL}, v{HT+3}, 4, v{hZL}')
    I(f's_mul_i32 s{sT0}, s{sRB}, 1360\ns_add_u32 s{sT0}, s{sT0}, {KVS}\nv_bfe_u32 v{HT+2}, v1, 4, 1\nv_lshlrev_b32 v{hZW}, 5, v{HT+2}\nv_add_u32 v{hZW}, s{sT0}, v{hZW}')
    I(f'v_mul_u32_u24 v{hKW}, 80, v{HT+1}\nv_add_u32 v{hKW}, v{hKW}, v{hZW}\nv_lshrrev_b32 v{HT+2}, 5, v1\nv_lshl_add_u32 v{hKW}, v{HT+2}, 3, v{hKW}')
    I(f'v_lshl_add_u32 v{hZW}, v{HT+3}, 3, v{hZW}')
    I(f'v_and_b32 v{HT+2}, 1, v1\nv_lshlrev_b32 v{HT+2}, 4, v{HT+2}\nv_mov_b32 v{HT+3}, 0x3f80\nv_lshlrev_b32 v{HT+2}, v{HT+2}, v{HT+3}\nv_bfe_u32 v{HT+3}, v1, 1, 3')
    for i in range(0, 8, 2):
        I(f'v_cmp_eq_u32 vcc, {i}, v{HT+3}\nv_cmp_eq_u32 s[{sT0}:{sT0+1}], {i+1}, v{HT+3}\nv_cndmask_b32 v{SEL0+i}, 0, v{HT+2}, vcc\nv_cndmask_b32 v{SEL0+i+1}, 0, v{HT+2}, s[{sT0}:{sT0+1}]')
    for i in range(4):
        I(f'v_mov_b32 v{ONES+i}, 0x3f803f80\nv_mov_b32 v{MARK+i}, -1')
    o_addrs(vOS, OA, FA)
    I(f'v_subrev_u32 v{hWX}, s{sLX}, v{vWoO}\nv_subrev_u32 v{hWX}, s{sLX}, v{hWX}\nv_subrev_u32 v{hWX}, s{sLX}, v{hWX}\nv_subrev_u32 v{hWX}, s{sLX}, v{hWX}')
    I(f's_and_b32 s{sT0}, s{sWv}, 1\ns_lshl_b32 s{sT0}, s{sT0}, 5\nv_xor_b32 v{hWX}, s{sT0}, v{hWX}\nv_xor_b32 v30, 32, v{hWX}')
    p2_scalars('B')
    w16_addr(HT + 2, HT)
    p2_setup(HT, HT + 2, PARK)


def dma_wphi():
    srd_tail(S_MISC, 16384)
    I(f's_lshl_b32 s{sD}, s{sWv}, 9\ns_add_u32 m0, s{sD}, {MISC}')
    I(f's_lshl_b32 s{sSPIN}, s{sG}, 11\ns_add_u32 s{sD}, s{sD}, s{sSPIN}\nv_lshlrev_b32 v7, 4, v1\ns_mov_b32 exec_hi, 0')
    I(f'buffer_load_dwordx4 v7, {sr(S_MISC,4)}, s{sD} offen lds', 'wphi')
    I('s_mov_b64 exec, -1')


I('s_waitcnt lgkmcnt(0)')
dma_wphi()
hs = capture(h_setup)
hs2 = []
if args.hs2:
    cutp = [i for i, (t_, _) in enumerate(hs) if t_.startswith(f's_and_b32 s{sM0}, s2, 7')][0]
    hs, hs2 = hs[:cutp], hs[cutp:]
if args.early == 2:
    kk = int(len(hs) * args.afrac)
    flush(hs[:kk])
    hs = hs[kk:]
for s in range(2, args.dk):
    for f in a_stage(s):
        f()
if args.early == 1:
    flush(hs)
def fills():
    for j in range(2):
        I(f'buffer_store_dwordx4 {vr(MARK,4)}, v{(hKS, hZS)[j]}, {sr(S_WS,4)}, 0 offen offset:{1024*j} sc1', 'fill')
    if args.ospec:
        for h in range(4):
            I(f'buffer_store_dwordx4 {vr(MARK,4)}, v{vOS}, {sr(S_WS,4)}, 0 offen offset:{h*1024} sc1', 'fill')


nq = 0
if args.q0:
    for f in qdma(0):
        f()
    nq = 1
stamp(1)
if args.hp1:
    prio(args.hp1)
carry = []
for s in range(8):
    barrier(vm=f'st{s}')
    if s:
        stamp(4 + s, 'b')
    if s == 0:
        stamp(2)
    if s + args.dk < 8:
        nxt = a_stage(s + args.dk)
        q = carry + nxt[:args.ahead]
        carry = nxt[args.ahead:]
    else:
        q = carry
        carry = []
        for _ in range(int(args.qafter[s + args.dk - 8])):
            assert nq < 3 or (nq < 5 and s >= 6)
            q += qdma(nq)
            nq += 1
    for f in q:
        f()
        if not args.hlate:
            emit_side(hs, args.hsb)
    if args.hlate and s >= 6:
        kk = len(hs) // 3 if s == 6 else len(hs)
        flush(hs[:kk])
        hs = hs[kk:]
    if s == 5:
        if not args.hlate:
            flush(hs)
        for h in range(NH):
            for u in range(2):
                I(f'ds_read_b64_tr_b16 {vr(HW+4*h+2*u,2)}, v{hWP} offset:{h*512+u*128}', 'wph')
    if s == 6:
        a.wait(lds='all')
        for i in range(4 * NH):
            I(f'v_xor_b32 v{HW+i}, v{hSG}, v{HW+i}')
ready_issue()
while nq < args.qmax:
    for f in qdma(nq):
        f()
    nq += 1
we = halves(WEARLY[args.wem:5 - args.wec - args.wel], 0, 'wo')
for f in we[:args.we0]:
    f()
if args.fwho == 'e':
    fills()
ready_check(HT)
stamp(3)
barrier(vm='q1' if args.qpr and NH else None)
stamp(4)
prio(3)
for h in range(NH):
    I(f'ds_read_b128 {vr(HK+4*h,4)}, v{hHD} offset:{PHI+h*8192}', f'kh{h}')
dl = [f for i in range(nq, 8) for f in qdma(i)]
dl.pop(0)()
for h in range(NH):
    a.wait(lds=f'kh{h}')
    swap16(HK + 4 * h)
    mfma32(HP + 16 * h, HW + 4 * h, HK + 4 * h, None)
dl.pop(0)()
dl.pop(0)()
prio(args.hprio)
stream(capture(lambda: [phi_k(h, HP + 16 * h, HT, hPW) for h in range(NH)]), spread(dl + we[args.we0:] + ([fills] if args.fwho == 'h' else []), 0.0, args.fat))
stamp(5)
stamp(5, 'e')
barrier(vm='q7', lds='all')
prio(args.kprio)
stamp(6)
stamp(6, 'e')
VF, PF, D0 = 32, 48, 80
for T in range(5):
    if T < 4:
        for sg in range(2):
            for u in range(2):
                I(f'ds_read_b64_tr_b16 {vr(PF+8*T+4*sg+2*u,2)}, v{hPR+sg} offset:{PHI+T*2048+u*512}', f'k{T}')
        for u in range(2):
            I(f'ds_read_b64_tr_b16 {vr(VF+4*T+2*u,2)}, v{hVR} offset:{T*1024+u*512}', f'k{T}')
    if T >= 1:
        a.wait(lds=f'k{T-1}')
        if T == args.ksig:
            a.wait(vm='fill')
            signal(sHL)
        for sg in range(2):
            mfma16(D0 + 4 * sg, PF + 8 * (T - 1) + 4 * sg, VF + 4 * (T - 1), None if T == 1 else D0 + 4 * sg)
        for sg in range(2):
            mfma16(D0 + 8 + 4 * sg, PF + 8 * (T - 1) + 4 * sg, ONES, None if T == 1 else D0 + 8 + 4 * sg)
a.wait(vm='fill')
if 'k' in args.force:
    signal(sHL)
    I(f's_and_b32 s{sT0}, s{sC}, 3\ns_cmp_eq_u32 s{sT0}, 1\ns_cbranch_scc0 L_fk')
    I('s_sleep 40')
    a.label('L_fk')
for j in range(2):
    for i in range(4):
        I(f'v_cvt_pk_bf16_f32 v{HK+4*j+i}, v{D0+8*j+2*i}, v{D0+8*j+2*i+1}')
    I(f'buffer_store_dwordx4 {vr(HK+4*j,4)}, v{(hKS, hZS)[j]}, {sr(S_WS,4)}, 0 offen offset:{1024*j} sc1', 'kvst')
if 'k' not in args.force and args.ksig == 5:
    signal(sHL)
prio(0)
stamp(7)
stamp(7, 'e')
I(f's_lshl_b32 s{sT0}, s{sWv}, 13\ns_lshl_b32 s{sT1}, s{sWv}, 16\ns_lshl_b32 s{sT2}, s{sWv}, 12\ns_lshl_b32 s{sT3}, s{sWv}, 15')


def wo_mid(j):
    if j < 8:
        I(f's_add_u32 m0, s{sT0}, {PHI+1024*j}\ns_add_u32 s{sD}, s{sT1}, {8192*j}')
    else:
        I(f's_add_u32 m0, s{sT2}, {VIM+1024*(j-8)}\ns_add_u32 s{sD}, s{sT3}, {4*65536+8192*(j-8)}')
    I(f'buffer_load_dwordx4 v{30 if j & 1 else hWX}, {sr(S_WOB,4)}, s{sD} offen lds', 'wo')


def part_load(P, sg):
    so = f's{sW+P}'
    if sg < 4:
        I(f'buffer_load_dwordx4 {vr(PART+16*P+4*sg,4)}, v{hPL}, {sr(S_WS,4)}, {so} offen offset:{sg*256} sc1', f'p{P}{sg}')
    else:
        I(f'buffer_load_dwordx4 {vr(ZP+4*P,4)}, v{hZL}, {sr(S_WS,4)}, {so} offen offset:1024 sc1', f'p{P}4')


plist = [(lambda P, sg: (lambda: part_load(P, sg)))(P, sg) for P in range(4) for sg in range(5)]
for j in range(12):
    if j == args.mid0:
        count_issue(sHL)
    wo_mid(j)
    if j < 8:
        I(f'v_mov_b32 v{SEL+j}, v{SEL0+j}')
for f in halves(WEARLY[:args.wem], 0, 'wo'):
    f()
flush(hs2)
for P in range(4):
    if args.krot:
        I(f's_add_u32 s{sD}, s{sC}, {P}\ns_and_b32 s{sD}, s{sD}, 3\ns_mul_i32 s{sW+P}, s{sD}, {4*KSTR}')
    else:
        I(f's_mov_b32 s{sW+P}, {P*4*KSTR}')
unpark()
a.wait(lds='all')
stamp(8, 'e')
lates = lambda: halves([('A', g) for g in range(3 - args.wel, 8)], 0, 'woa')
for _ in range(args.npoll - 1):
    I(f's_cmp_ge_u32 s{sPV}, 16\ns_cbranch_scc1 L_quick')
    count_issue(sHL)
    I('s_waitcnt lgkmcnt(0)')
I(f's_cmp_ge_u32 s{sPV}, 16\ns_cbranch_scc0 L_slow1')
a.label('L_quick')
q1 = list(a.vmq)
for f in plist[:args.nlb]:
    f()
a.wait(vm='wo')
signal(sOFF)
I('s_barrier')
stamp(9, 'e')
stream(capture(wo_frags)[:args.nf0], spread(plist[args.nlb:] + lates()[:args.nl0]) if args.nlb < 20 or args.nl0 else [])
I('s_branch L_sums')
a.label('L_slow1')
a.vmq = list(q1)
count_issue(sHL)
a.wait(vm='all')
signal(sOFF)
I('s_barrier')
stamp(9, 'e')
I(f's_waitcnt lgkmcnt(0)\ns_cmp_ge_u32 s{sPV}, 16\ns_cbranch_scc0 L_slow2')
stream(capture(wo_frags)[:args.nf0], spread(plist + lates()[:args.nl0]))
I('s_branch L_sums')
a.label('L_slow2')
a.vmq = []
count_issue(sHL)
flush(capture(wo_frags)[:args.nf0])
a.label('L_again')
sspin(lambda: count_issue(sHL), 16, first=False)
for f in plist + lates()[:args.nl0]:
    f()
a.label('L_sums')
count_issue(sPF)
stamp(8)
stamp(10, 'e')
prio(3)
for P in range(4):
    for sg in range(5):
        a.wait(vm=f'p{P}{sg}')
        if sg < 4:
            d = DS_ + 4 * (sg >> 1)
            mfma16(d, SEL + 4 * (sg & 1), PART + 16 * P + 4 * sg, None if P == 0 and sg % 2 == 0 else d)
        else:
            mfma16(DS_ + 8, SEL, ZP + 4 * P, None if P == 0 else DS_ + 8)
I(f's_bitcmp1_b32 s{sHL}, 6')
I(f'v_add_f32 v{DS_+12}, v{DS_}, v{DS_+4}\nv_cmp_u_f32 vcc, v{DS_+12}, v{DS_+8}')
I('s_cbranch_scc1 L_take\ns_cbranch_vccz L_take')
I(f's_add_u32 s{sHL}, s{sHL}, 64\ns_waitcnt lgkmcnt(0)\ns_mov_b32 s{sPV}, 0\ns_branch L_again')
a.label('L_take')
for q in range(3):
    d = DS_ + 4 * q
    I(f'v_cvt_pk_bf16_f32 v{d}, v{d}, v{d+1}\nv_cvt_pk_bf16_f32 v{d+1}, v{d+2}, v{d+3}')
    if q < 2:
        I(f'ds_write_b64 v{hKW}, {vr(d,2)} offset:{16*q}')
    else:
        I('s_mov_b32 exec_hi, 0')
        I(f'ds_write_b64 v{hZW}, {vr(d,2)} offset:1280')
        I('s_mov_b64 exec, -1')
stamp(11, 'e')
prio(0)
if args.nl1x or args.nf1x:
    stream(capture(wo_frags)[args.nf0:args.nf0 + args.nf1x], spread(lates()[args.nl0:args.nl0 + args.nl1x]) if args.nl1x else [])
    args.nf0 += args.nf1x
    args.nl0 += args.nl1x
barrier(lds='all')
stamp(9)
p2_consts()
olist = [(lambda k: (lambda: o_load(k)))(k) for k in range(args.npb)]
I(f's_cmp_ge_u32 s{sPV}, 8\ns_cbranch_scc0 L_hlate')
stamp(11)
stamp(5, 'm')
stream(capture(wo_frags)[args.nf0:], spread(lates()[args.nl0:] + [gate_loads] + olist[:args.pbar]))
I(f's_waitcnt vmcnt({args.pbar+2}) lgkmcnt(0)\ns_barrier')
for f in olist[args.pbar:]:
    f()
I('s_branch L_p2mb')
a.label('L_hlate')
count_issue(sPF)
stream(capture(wo_frags)[args.nf0:], spread(lates()[args.nl0:], 0.0, 0.6) if args.nl0 < len(lates()) else [])
I(f's_waitcnt lgkmcnt(0)\ns_cmp_ge_u32 s{sPV}, 8\ns_cbranch_scc0 L_hlate2')
stamp(11)
stamp(5, 'm')
gate_loads()
for f in olist[:2]:
    f()
I('s_waitcnt vmcnt(4)\ns_barrier')
for f in olist[2:]:
    f()
I('s_branch L_p2mb')
a.label('L_hlate2')
count_issue(sPF)
I('s_waitcnt vmcnt(0)\ns_barrier\ns_branch L_p2chk')

a.label('L_acomp')
a.vmq, a.lq = [], []
cXR, cWR, cPW, cHD, cVW, cWP, cSG, cTR = 2, 8, 22, 24, 25, 26, 27, 30
ACK, ACV, RING, KF, X = 32, 64, 96, 120, 128
if args.upj:
    I(f's_and_b32 s{sC}, s2, 1\ns_lshl3_add_u32 s{sC}, s{sC}, s{sT1}\nv_and_b32 v9, 7, v0\ns_mov_b32 s{S_X+3}, 0x20000\ns_mov_b32 s{sK}, 0')
I('s_waitcnt lgkmcnt(0)')
prologue_w(0)
prologue_rest(0)
srd_tail(S_WS, WS_REC)
I(f's_lshl_b32 s{sT3}, s{sRB}, 12')
x16_addr(cXR, ACV, sT3)
w16_addr(cWR, ACV)
for h in range(1, 4):
    I(f'v_xor_b32 v{cWR+h}, {32*h}, v{cWR}')
for wn in (1, 2):
    for h in range(4):
        I(f'v_add_u32 v{cWR+4*wn+h}, {wn*0x10000}, v{cWR+h}')
I(f'v_subrev_u32 v{vWo2}, 0x8000, v{vWoO}')
late_scalars()
wphi_addr(cWP, cSG, ACV)
phi_addr(cPW, cHD, ACV)
I(f'v_and_b32 v{ACV}, 15, v1\nv_lshrrev_b32 v{ACV+1}, 4, v1\nv_bfe_u32 v{ACV+2}, v1, 1, 2\nv_xor_b32 v{ACV+1}, v{ACV+1}, v{ACV+2}')
I(f'v_lshlrev_b32 v{cVW}, 6, v{ACV}\nv_lshl_or_b32 v{cVW}, v{ACV+1}, 4, v{cVW}')
I(f's_lshl_b32 s{sT0}, s{sRB}, 10\ns_add_u32 s{sT0}, s{sT0}, {VIM}\nv_add_u32 v{cVW}, s{sT0}, v{cVW}')
I(f's_mov_b32 s{sONE}, 2\ns_mov_b32 s{sHP}, 0')
join_addr(ACV)
p2_scalars('A')
I('s_waitcnt lgkmcnt(0)')
if args.tw:
    page_touch(255)
stamp(1)


def tr2(dst, addr, h, tag):
    wn, off = win(addr)
    assert off + 512 <= 0xFFFF
    I(f'ds_read_b64_tr_b16 {vr(dst,2)}, v{cWR+4*wn+h} offset:{off}', tag)
    I(f'ds_read_b64_tr_b16 {vr(dst+2,2)}, v{cWR+4*wn+h} offset:{off+512}', tag)


def g_reads(f):
    n, t = f >> 3, f & 7
    base = SLOT(n // 2)
    if t == 0:
        for i in range(2):
            wn, off = win(base + 2048 * i)
            I(f'ds_read_b128 {vr(X+8*n+4*i,4)}, v{cXR+2*wn+(n&1)} offset:{off}', f'g{f}')
    tr2(RING + 4 * t, base + (2 + (t >> 2)) * BLK + (n & 1) * 4096, t & 3, f'g{f}')


LG = args.lg
rd = []
for f in range(128 + LG):
    if f < 128 and f % 16 == 0:
        flush(rd)
        barrier(vm='all' if f == 96 else None, lds='all' if f == 112 else None)
        if f:
            stamp(4 + f // 16, 'b')
        if f == 0:
            stamp(2)
            prio(2)
    if f < 128:
        rd += capture(lambda: g_reads(f))
    if f == 124 + LG:
        rd += capture(lambda: [I(f'ds_read_b64_tr_b16 {vr(RING+4*h+2*u,2)}, v{cWP} offset:{h*512+u*128}', 'wq') for h in (2, 3, 0, 1) for u in range(2)])
    for i in range(2):
        if f >= LG:
            j = f - LG
            n, t = j >> 3, j & 7
            if i == 0 and j % 2 == 0:
                a.wait(lds=f'g{j+1}')
            acc = ACK + 8 * t + 4 * i
            mfma16(acc, RING + 4 * t, X + 8 * n + 4 * i, None if n == 0 else acc)
        for _ in range(2 if len(rd) > 2 - i else 1):
            if rd:
                a.I(*rd.pop(0))
assert not rd
stamp(3)
WQ, CT = RING, RING + 16


def pack(src, d):
    for i in range(4):
        I(f'v_cvt_pk_bf16_f32 v{d+i}, v{src+2*i}, v{src+2*i+1}')


QR, NQR, LQ = ACV, 6, args.lq
order = [(n, 2 * ct + e) for ct in range(2) for n in range(16) for e in range(2)]
qread = lambda k: tr2(QR + 4 * (k % NQR), QBLK[order[k][0] // 2] * BLK + (order[k][0] & 1) * 4096, order[k][1], f'q{k}')
vi = capture(lambda: [(pack(ACV + 8 * h, ACV + 8 * h), I(f'ds_write_b128 v{cVW}, {vr(ACV+8*h,4)} offset:{h*4096}', 'side')) for h in range(4)])
zipped = lambda x, y: [z for xy in zip(x, y) for z in xy] if args.zip else x + y
if NH == 2:
    for h in range(2):
        pack(ACK + 8 * h, CT + 4 * h)
        I(f'ds_write_b128 v{cHD}, {vr(CT+4*h,4)} offset:{PHI+h*8192}', 'hand')
    pack(ACK + 16, CT + 8)
    if args.s2e:
        barrier(lds='all')
        stamp(4)
    pack(ACK + 24, CT + 12)
    swap16(CT + 8)
    a.wait(lds='wq')
    swap16(CT + 12)
    for i in range(8, 16):
        I(f'v_xor_b32 v{WQ+i}, v{cSG}, v{WQ+i}')
    if not args.s2e:
        barrier(lds='all')
        stamp(4)
    for h in (2, 3):
        mfma32(ACK + 16 * (h - 2), WQ + 4 * h, CT + 4 * h, None)
    prio(args.cprio)
    ph = capture(lambda: [phi_k(h, ACK + 16 * (h - 2), CT, cPW) for h in (2, 3)])
    xr = [(f'v_xor_b32 v{WQ+i}, v{cSG}, v{WQ+i}', None) for i in range(8)]
    pre = capture(lambda: [qread(k) for k in range(LQ)]) if args.qpr else []
    flush(vi[:10] + ph[:24] + vi[10:15] + ph[24:44] + vi[15:] + ph[44:-8] + pre + ph[-8:] + ([] if args.xlate else xr))
else:
    barrier(lds='all')
    stamp(4)
    for i in range(8):
        I(f'v_xor_b32 v{WQ+i}, v{cSG}, v{WQ+i}')
    for h in range(4):
        pack(ACK + 8 * h, CT + 4 * h)
    for h in range(2):
        mfma32(ACK + 16 * h, WQ + 4 * h, CT + 4 * h, None)
    xr = [(f'v_xor_b32 v{WQ+i}, v{cSG}, v{WQ+i}', None) for i in range(8, 16)]
    flush(vi[:5] + xr[:4] + vi[5:10] + xr[4:] + vi[10:])
    for h in (2, 3):
        mfma32(ACK + 16 * h, WQ + 4 * h, CT + 4 * h, None)
    pk_ = lambda h: capture(lambda: phi_k(h, ACK + 16 * h, CT + 8 * (h & 1), cPW))
    flush(zipped(pk_(0), pk_(1)) + zipped(pk_(2), pk_(3)))
stamp(5)
stamp(5, 'e')
barrier(lds='all')
prio(2)
stamp(6)
stamp(6, 'e')
PQ4 = (32, 128, 144, 160)
QT = ACV + 24
front = capture(lambda: [pack(ACK, CT), pack(ACK + 8, CT + 4), swap16(CT), swap16(CT + 4), mfma32(PQ4[0], WQ, CT, None)])
sm0 = capture(lambda: softmax16(PQ4[0], QT, 0))
t0 = None
cwl = halves(WEARLY[5 - args.wec:], 1, 'wo')
if not (args.qpr and NH):
    for k in range(LQ):
        qread(k)
for k in range(LQ, 64 + LQ):
    j = k - LQ
    rd = capture(lambda: qread(k)) if k < 64 else []
    n, h = order[j]
    if j % 2 == 0:
        a.wait(lds=f'q{j+1}')
    for i in range(2):
        acc = ACK + 8 * h + 4 * i
        mfma16(acc, QR + 4 * (j % NQR), X + 8 * n + 4 * i, None if n == 0 else acc)
        if rd:
            a.I(*rd.pop(0))
        if cwl and i == 1:
            cwl.pop(0)()
        if args.xlate and 20 <= j < 24:
            a.I(*xr[2 * (j - 20) + i])
        room = 1 + (not rd and k >= 64)
        if j >= 34 and front:
            a.I(*front.pop(0))
            t0 = j
        elif t0 and j == t0 + 2:
            if i:
                mfma32(PQ4[1], WQ + 4, CT + 4, None)
        elif t0 and j >= t0 + 3 and (i == 0 or j % 2 == 0 or args.qown > 2):
            for _ in range(room):
                a.I(*sm0.pop(0))
    if j == 32:
        stamp(7, 'e')
print('first query head left after pass Q:', len(sm0))
stamp(7)
stamp(8, 'e')
if args.svpos == 0:
    barrier(vm='all')
flush(sm0[:12])
for h in (2, 3):
    pack(ACK + 8 * h, CT + 4 * h)
for h in (2, 3):
    swap16(CT + 4 * h)
for h in (2, 3):
    mfma32(PQ4[h], WQ + 4 * h, CT + 4 * h, None)
flush(sm0[12:])
stamp(9, 'e')
if args.svpos == 1:
    I('s_barrier')
stamp(10, 'e')
softmax16(PQ4[1], QT, args.pk)
flush(zipped(capture(lambda: softmax16(PQ4[2], QT, args.pk)), capture(lambda: softmax16(PQ4[3], QT - 8, args.pk))))
stamp(8)
stamp(11, 'e')
I('s_barrier')
stamp(9)
if 'a' in args.force:
    signal(sFL)
    I(f's_and_b32 s{sT0}, s{sG}, 3\ns_cmp_eq_u32 s{sT0}, 1\ns_cbranch_scc0 L_fa')
    I('s_sleep 30')
    a.label('L_fa')
KV4, NU4 = 176, 48
for h in range(4):
    for t in range(2):
        I(f'ds_read_b128 {vr(KV4+8*h+4*t,4)}, v{vKR} offset:{h*1360+t*16}', f'kv{h}')


def o_tail(h, pk):
    N = NU4 + 16 * h
    I(f'v_add_f32 v{N+8}, 0x358637bd, v{N+8}\nv_rcp_f32 v{N+8}, v{N+8}')
    for i in range(4):
        if pk:
            I(f'v_pk_mul_f32 {vr(N+2*i,2)}, {vr(N+2*i,2)}, {vr(N+8,2)} op_sel_hi:[1,0]')
        else:
            I(f'v_mul_f32 v{N+2*i}, v{N+2*i}, v{N+8}\nv_mul_f32 v{N+2*i+1}, v{N+2*i+1}, v{N+8}')
    for i in range(4):
        I(f'v_cvt_pk_bf16_f32 v{N+i}, v{N+2*i}, v{N+2*i+1}')
    I(f'buffer_store_dwordx4 {vr(N,4)}, v{vOS}, {sr(S_WS,4)}, 0 offen offset:{h*1024} sc1')
    if h + 1 == args.osig and h < 3:
        signal(sFL)


tails = []
for h in range(4):
    a.wait(lds=f'kv{h}')
    if h == 3 and args.osig == 0:
        signal(sFL)
    for t in range(2):
        mfma32(NU4 + 16 * h, KV4 + 8 * h + 4 * t, PQ4[h] + 4 * t, None if t == 0 else NU4 + 16 * h)
        if h >= 2:
            emit_slots(tails, 6)
    tails += capture(lambda: o_tail(h, h >= 2))
flush(tails)
if 'a' not in args.force and args.osig == 4:
    signal(sFL)
I(f's_add_u32 s{sFL}, s{sFL}, 64')
stamp(10)
for t_, tag in capture(lambda: p2_setup(CT, cWR)):
    if not t_.startswith('ds_write'):
        a.I(t_, tag)
p2_consts()
I(f'v_add_u32 v{pXW}, {XA}, v{pXW}')
I('s_barrier')
fr = capture(wo_frags)
for x in fr[:args.nfr]:
    a.I(*x)
count_issue(sPF)
for x in fr[args.nfr:]:
    a.I(*x)
I('s_waitcnt vmcnt(0) lgkmcnt(0)')
signal(sFL)
I(f's_cmp_ge_u32 s{sPV}, 8\ns_cbranch_scc1 L_p2go')
count_issue(sPF)
I('s_branch L_p2chk')

a.label('L_roleB')
a.vmq, a.lq = list(topq), []
BSL = 41 * 1024
BS = lambda s: (s % 3) * BSL
KI = 3 * BSL
QI = 4 * BLK
WMAP.update(B=[11, 12, 13, 14, 0, 1, 2, 3], A=[4, 5, 8, 9, 15, 16, 17, 18])
bXR, bWR, bHW, bHX = 8, 16, 18, 20
bKW, bHWR, bKP, bVR, bOS, bGS, bGR, bQA, bGW = 24, 25, 26, 27, 28, 29, 30, 22, 23
GI = XL + XGO
BIAS, MSK, BT = 188, 208, 220
QF, KFB, KP, VA = 128, 136, 144, 152


def b_ids():
    prologue_rest(1)
    srd_tail(S_WS, WS_REC)
    srd_tail(S_MISC, 1024)
    I(f's_and_b32 s{sT0}, s{sWv}, 1\ns_lshl_b32 s{sT0}, s{sT0}, 1\ns_xor_b32 s{sRB}, s{sHP}, 1\ns_add_u32 s{sRB}, s{sRB}, s{sT0}')
    I(f's_bfe_u32 s{sHP}, s{sWv}, 0x10001')


def b_setup(br):
    late_scalars()
    I(f'v_and_b32 v{BT+1}, 7, v1')
    I(f's_lshl_b32 s{sT0}, s{sC}, 3\ns_add_u32 s{sT0}, s{sT0}, s{sG}\ns_lshl_b32 s{sT0}, s{sT0}, 9\ns_lshl_b32 s{sT1}, s{sRB}, 7\ns_add_u32 s{sT0}, s{sT0}, s{sT1}\ns_add_u32 s{sT0}, s{sT0}, {GP}')
    I(f'v_lshlrev_b32 v{bGR}, 2, v1\nv_add_u32 v{bGS}, s{sT0}, v{bGR}\nv_mov_b32 v{BT+4}, {OOB:#x}')
    I(f's_cmp_eq_u32 s{sHP}, 0\ns_cselect_b32 s{sT0}, 32, 0')
    I(f'v_cmp_gt_u32 vcc, s{sT0}, v1\nv_cndmask_b32 v{bGS}, v{BT+4}, v{bGS}, vcc')
    I(f's_lshl_b32 s{sT0}, s{sRB}, 8\ns_add_u32 s{sT0}, s{sT0}, {GI}\nv_add_u32 v{bGR}, s{sT0}, v{bGR}')
    I(f's_mul_i32 s{sT0}, s{sHP}, 8704\ns_lshl_b32 s{sT1}, s{sRB}, 10\ns_add_u32 s{sT0}, s{sT0}, s{sT1}\ns_add_u32 s{sT0}, s{sT0}, {KI}')
    I(f'v_lshrrev_b32 v{BT+2}, 5, v1\nv_and_b32 v{BT+3}, 31, v1\nv_lshlrev_b32 v{bKW}, 5, v{BT+3}\nv_lshl_or_b32 v{bKW}, v{BT+2}, 4, v{bKW}\nv_add_u32 v{bKW}, s{sT0}, v{bKW}')
    I(f'v_lshlrev_b32 v{bKP}, 5, v{BT+1}\nv_lshl_or_b32 v{bKP}, v{BT+2}, 4, v{bKP}\nv_add_u32 v{bKP}, s{sT0}, v{bKP}')
    if args.bsw:
        I(f'v_and_b32 v{BT+4}, 4, v1\nv_lshlrev_b32 v{BT+4}, 2, v{BT+4}\nv_xor_b32 v{bKW}, v{bKW}, v{BT+4}\nv_xor_b32 v{bKP}, v{bKP}, v{BT+4}')
    I(f'v_bfe_u32 v{BT+4}, v1, 2, 2\nv_lshl_add_u32 v{BT+4}, v{BT+2}, 2, v{BT+4}\nv_lshlrev_b32 v{bVR}, 5, v{BT+4}')
    I(f'v_and_b32 v{BT+4}, 1, v1\nv_lshl_or_b32 v{bVR}, v{BT+4}, 4, v{bVR}\nv_bfe_u32 v{BT+4}, v1, 1, 1\nv_lshl_or_b32 v{bVR}, v{BT+4}, 3, v{bVR}')
    if args.bsw:
        I(f'v_lshlrev_b32 v{BT+4}, 4, v{BT+2}\nv_xor_b32 v{bVR}, v{bVR}, v{BT+4}')
    I(f'v_bfe_u32 v{BT+4}, v1, 4, 1\nv_mul_u32_u24 v{BT+4}, 4352, v{BT+4}\nv_add3_u32 v{bVR}, v{bVR}, v{BT+4}, s{sT0}')
    I(f's_and_b32 s{sT0}, s{sWv}, 3\ns_lshl_b32 s{sT0}, s{sT0}, 11\ns_add_u32 s{sT0}, s{sT0}, {QI}\nv_lshlrev_b32 v{bQA}, 4, v1\nv_add_u32 v{bQA}, s{sT0}, v{bQA}')
    o_addrs(bOS, OB, FB)
    I(f'v_lshlrev_b32 v{BT+2}, 2, v{BT+2}\nv_sub_u32 v{BT+2}, v{BT+3}, v{BT+2}\ns_lshr_b32 s{sT0}, s{sC}, 1\ns_or_b32 s{sT0}, s{sT0}, s{sRB}')
    I(f's_cmp_eq_u32 s{sT0}, 0\ns_cselect_b32 s{sT0}, 1000, 8')
    I(f'v_add_u32 v{BT+3}, s{sT0}, v{BT+2}\nv_mov_b32 v{BT+4}, 0xf149f2ca\nv_mov_b32 v{BT+5}, 0xffff\nv_mov_b32 v{BT+6}, 0xffff0000\nv_mov_b32 v{BT+10}, 0')
    for r in range(20):
        aa, b = r >> 2, r & 3
        if r < 16:
            I(f'v_subrev_u32 v{BT+8}, {8*aa+b}, v{BT+2}')
        else:
            I(f'v_subrev_u32 v{BT+8}, {b}, v{BT+3}')
        md = MSK + r // 2 if b % 2 == 0 else BT + 9
        I(f'v_cmp_ge_u32 vcc, 7, v{BT+8}\nv_cndmask_b32 v{BIAS+r}, v{BT+4}, v{BT+10}, vcc\nv_cndmask_b32 v{md}, 0, v{BT+5+b%2}, vcc')
        if b % 2:
            I(f'v_or_b32 v{MSK+r//2}, v{MSK+r//2}, v{BT+9}')
    p2_scalars(br)
    w16_addr(BT + 2, BT)
    p2_setup(BT, BT + 2, PARK)


vWO2, vHO = 34, 7
BG, BH, BHF, GF, GXF = 48, 64, 72, 96, 112


def b_dx(s, q):
    need_k(s)
    I(f's_add_u32 m0, s{sLX}, {BS(s)+1024*(q&1)+8192*(q>>1)}')
    I(f'buffer_load_dwordx4 v{(vXO, vXO+1, vXO2, vXO2+1)[q]}, {sr(S_X,4)}, s{sK} offen lds', f'st{s}')


def b_dw(s, j, q):
    I(f's_add_u32 m0, s{sLW}, {BS(s)+16384+j*BLK+4096*q-1024*j}')
    I(f'buffer_load_dwordx4 v{(vWQ, vWO2)[q]}, {sr(S_W,4)}, s{sW+s} offen offset:{1024*j} lds', f'st{s}')


def b_halo(s):
    I(f's_add_u32 m0, s{sHL}, {BS(s)+40960}')
    I('s_mov_b64 exec, 0xffff')
    I(f'buffer_load_dwordx4 v{vHO}, {sr(S_X,4)}, s{sK} offen lds', f'st{s}')
    I('s_mov_b64 exec, -1')


def b_stage(s):
    q = [(lambda q: (lambda: b_dx(s, q)))(q) for q in range(4)]
    q += [(lambda j, q: (lambda: b_dw(s, j, q)))(j, q) for j in range(3) for q in range(2)]
    q.append(lambda: b_halo(s))
    return q


st0 = b_stage(0)
prologue_w(1)
I(f's_and_b32 s{sT2}, s{sWv}, 1\ns_lshl_b32 s{sT2}, s{sT2}, 5\nv_xor_b32 v{vWQ}, s{sT2}, v{vWQ}')
I(f'v_add_u32 v{vWO2}, {32*3072}, v{vWQ}')
if not args.bdelay:
    for f in st0[4:10]:
        f()
stamp(6, 's')
b_ids()
I(f's_lshl_b32 s{sT1}, s{sWv}, 1\ns_lshl_b32 s{sT0}, s{sWv}, 12\ns_add_u32 s{sT0}, s{sT0}, s{sOFF}\ns_sub_u32 s{sT0}, s{sT0}, 0x4000')
I(f'v_and_b32 v{vHO}, 7, v1\nv_xor_b32 v{vHO}, s{sT1}, v{vHO}\nv_lshlrev_b32 v{vHO}, 4, v{vHO}\nv_lshl_or_b32 v{vHO}, v8, 11, v{vHO}\nv_add_u32 v{vHO}, s{sT0}, v{vHO}')
I(f's_lshl_b32 s{sHL}, s{sWv}, 8')
st0[10]()
I('s_waitcnt lgkmcnt(0)')
I(f'v_lshrrev_b32 v{BT+8}, 5, v1\nv_lshlrev_b32 v{BT+8}, 4, v{BT+8}\ns_lshl_b32 s{sT0}, s{sG}, 7')
for t in range(4):
    I(f'buffer_load_dwordx4 {vr(GF+4*t,4)}, v{BT+8}, {sr(S_MISC,4)}, s{sT0} offen offset:{32*t}', 'st0')
I(f's_mul_i32 s{sGS}, s{sG}, {64*3072}')
I(f'v_and_b32 v{bXR}, 31, v1\nv_lshrrev_b32 v{BT}, 5, v1\nv_bfe_u32 v{BT+1}, v1, 1, 3\nv_lshlrev_b32 v{bXR}, 7, v{bXR}')
I(f'v_xor_b32 v{BT}, v{BT}, v{BT+1}\ns_lshl_b32 s{sT0}, s{sWv}, 12\nv_lshl_or_b32 v{bXR}, v{BT}, 4, v{bXR}\nv_add_u32 v{bXR}, s{sT0}, v{bXR}')
w16_addr(bHW, BT)
I(f's_lshl_b32 s{sT0}, s{sWv}, 5\nv_xor_b32 v{bHW}, s{sT0}, v{bHW}\nv_add_u32 v{bHW+1}, 0x10000, v{bHW}')
I(f'v_and_b32 v{BT+1}, 7, v1\nv_and_b32 v{BT+2}, 6, v1\nv_xor_b32 v{BT+2}, v{BT+2}, v{BT}\nv_lshlrev_b32 v{bHX}, 7, v{BT+1}\nv_lshl_or_b32 v{bHX}, v{BT+2}, 4, v{bHX}')
I(f'v_xor_b32 v{bHX+1}, 64, v{bHX}\nv_add_u32 v{bXR+4}, 0x10000, v{bHX}\nv_add_u32 v{bXR+5}, 0x10000, v{bHX+1}')
I(f'v_lshlrev_b32 v{bHWR}, 5, v{BT+1}\nv_lshl_or_b32 v{bHWR}, v{BT}, 3, v{bHWR}\ns_mul_i32 s{sT0}, s{sWv}, 4352\ns_add_u32 s{sT0}, s{sT0}, {KI}\nv_add_u32 v{bHWR}, s{sT0}, v{bHWR}')
I(f's_lshl_b32 s{sT0}, s{sWv}, 8\ns_add_u32 s{sT0}, s{sT0}, {GI}\nv_lshlrev_b32 v{bGW}, 2, v1\nv_add_u32 v{bGW}, s{sT0}, v{bGW}')
SENB, vBF, vGF = 36, 35, 40


def b_fill_setup():
    I(f's_lshl_b32 s{sT0}, s{sC}, 2\ns_add_u32 s{sT0}, s{sT0}, s{sWv}\ns_mul_i32 s{sT1}, s{sT0}, {OSTR}\ns_lshl_b32 s{sT2}, s{sG}, 12\ns_add_u32 s{sT1}, s{sT1}, s{sT2}\ns_add_u32 s{sT1}, s{sT1}, {OB}')
    I(f'v_lshlrev_b32 v{vGF}, 4, v1\nv_add_u32 v{vBF}, s{sT1}, v{vGF}')
    I(f's_lshl_b32 s{sT0}, s{sC}, 3\ns_add_u32 s{sT0}, s{sT0}, s{sG}\ns_lshl_b32 s{sT0}, s{sT0}, 9\ns_lshl_b32 s{sT1}, s{sWv}, 7\ns_add_u32 s{sT0}, s{sT0}, s{sT1}\ns_add_u32 s{sT0}, s{sT0}, {GP}\nv_add_u32 v{vGF}, s{sT0}, v{vGF}')
    for i in range(4):
        I(f'v_mov_b32 v{SENB+i}, -1')


def b_fill(h):
    if h < 4:
        I(f'buffer_store_dwordx4 {vr(SENB,4)}, v{vBF}, {sr(S_WS,4)}, 0 offen offset:{h*1024} sc1', 'bfill')
    else:
        I('s_mov_b64 exec, 0xff')
        I(f'buffer_store_dwordx4 {vr(SENB,4)}, v{vGF}, {sr(S_WS,4)}, 0 offen sc1', 'bfill')
        I('s_mov_b64 exec, -1')


stamp(7, 's')
hset = capture(lambda: [b_setup('B'), b_fill_setup()])
st1 = b_stage(1)
if args.bx1:
    for f in st1[:4] + st1[10:]:
        f()
    st1 = st1[4:10]
kk = int(len(hset) * args.bfrac)
flush(hset[:kk])
hset = hset[kk:]
if args.bdelay:
    for f in st0[4:10]:
        f()
for f in st1[:args.bs1]:
    f()
if not args.blate:
    flush(hset)
for f in st1[args.bs1:]:
    f()
stamp(8, 's')
if args.nib == 3:
    for f in b_stage(2):
        f()
stamp(1)
prio(args.hb)
bwo = [('B', g) for g in range(8)]


def halo_mfma(first):
    if args.hb != 3:
        prio(3)
    for T in range(2):
        r = BHF + 12 * T
        for j in range(2):
            mfma16(BH + 4 * j, r + 4 + 4 * j, r, None if first and T == 0 else BH + 4 * j)
    if args.hb != 3:
        prio(args.hb)


def halo_reads(base):
    for T in range(2):
        r = BHF + 12 * T
        wn, off = win(base + 40960)
        I(f'ds_read_b128 {vr(r,4)}, v{(bHX, bXR+4)[wn]+T} offset:{off}')
        for j in range(2):
            wn, off = win(base + 16384 + (1 + j) * BLK + T * 4096)
            assert off + 512 <= 0xFFFF and wn < 2
            for u in range(2):
                I(f'ds_read_b64_tr_b16 {vr(r+4+4*j+2*u,2)}, v{bHW+wn} offset:{off+512*u}')


def warm_q():
    I(f's_load_dwordx2 s[{S_MISC}:{S_MISC+1}], s[0:1], 8')
    I(f's_and_b32 s{sT0}, s2, 127\ns_lshl2_add_u32 s{sT0}, s{sT0}, s{sWv}\ns_mul_i32 s{sT0}, s{sT0}, 3072\ns_waitcnt lgkmcnt(0)')
    I(f's_add_u32 s{S_MISC}, s{S_MISC}, s{sT0}\ns_addc_u32 s{S_MISC+1}, s{S_MISC+1}, 0')
    for j in range(8):
        I(f's_load_dword s{sT3}, s[{S_MISC}:{S_MISC+1}], {128*j}')


def warm_o(base):
    I(f's_and_b32 s{sT0}, s2, 127\ns_lshl2_add_u32 s{sT0}, s{sT0}, s{sWv}\ns_lshl_b32 s{sT0}, s{sT0}, 10')
    I(f's_add_u32 s{S_MISC}, s{base}, s{sT0}\ns_addc_u32 s{S_MISC+1}, s{base+1}, 0')
    for j in range(8):
        I(f's_load_dword s{sT3}, s[{S_MISC}:{S_MISC+1}], {128*j}')


def late_touch_o():
    skip, other = newlabel('nt'), newlabel('nt')
    I(f's_cmp_gt_u32 s{sWv}, 1\ns_cbranch_scc1 {skip}')
    I(f's_and_b32 s{sT0}, s2, 127\ns_lshl_b32 s{sT0}, s{sT0}, 12\nv_and_b32 v41, 31, v1\nv_lshlrev_b32 v41, 7, v41')
    I(f's_cmp_eq_u32 s{sWv}, 1\ns_cbranch_scc1 {other}')
    I(f'buffer_load_dword v42, v41, {sr(S_WOB,4)}, s{sT0} offen', cond=True)
    I(f's_branch {skip}')
    a.label(other)
    I(f'buffer_load_dword v42, v41, {sr(S_WOA,4)}, s{sT0} offen', cond=True)
    a.label(skip)


def late_touch_q():
    skip = newlabel('nt')
    I(f's_cmp_eq_u32 s{sWv}, 2\ns_cbranch_scc0 {skip}')
    I(f's_load_dwordx2 s[{S_MISC}:{S_MISC+1}], s[0:1], 8')
    I(f's_and_b32 s{sT0}, s2, 127\ns_mul_i32 s{sT0}, s{sT0}, {4*3072}\nv_bfe_u32 v41, v1, 3, 2\nv_mul_u32_u24 v41, 3072, v41\nv_and_b32 v42, 7, v1\nv_lshl_add_u32 v41, v42, 7, v41\nv_add_u32 v41, s{sT0}, v41')
    I(f's_waitcnt lgkmcnt(0)\nglobal_load_dword v42, v41, s[{S_MISC}:{S_MISC+1}]', cond=True)
    a.label(skip)


def scalar_warm(code):
    kind, half = code.lower(), int(code.isupper())
    if not half:
        if kind == 'q':
            I(f's_load_dwordx2 s[{S_MISC}:{S_MISC+1}], s[0:1], 8')
        I(f's_and_b32 s{sT0}, s2, 127\ns_lshl2_add_u32 s{sT0}, s{sT0}, s{sWv}\ns_mul_i32 s{sT0}, s{sT0}, {3072 if kind == "q" else 1024}')
        base = {'q': S_MISC, 'a': S_WOA, 'b': S_WOB}[kind]
        if kind == 'q':
            I('s_waitcnt lgkmcnt(0)')
        I(f's_add_u32 s{S_MISC}, s{base}, s{sT0}\ns_addc_u32 s{S_MISC+1}, s{base+1}, 0')
    for j in range(8):
        I(f's_load_dword s{sT3}, s[{S_MISC}:{S_MISC+1}], {512*half+64*j}')


SW = args.sw.split(',') if args.sw else []
assert args.chalo and args.hearly
for s in range(8):
    if s:
        stamp(4 + s, 'b0')
        a.wait(vm=f'st{s}')
        stamp(4 + s, 'b')
    barrier(vm=f'st{s}')
    if s == 0:
        stamp(2)
    base = BS(s)
    if s == 0 and args.nib == 3:
        q = []
    elif s <= 5:
        q = b_stage(s + 2)
    elif s == 6:
        q = halves(bwo[:4], 0, 'wo')
    else:
        q = halves(bwo[4:], 0, 'wo')
    if s < len(SW):
        for i_, code in enumerate(SW[s]):
            q.insert(2 + 6 * i_, (lambda c_: (lambda: scalar_warm(c_)))(code))
    if s == args.wst:
        q.insert(args.tpos, late_touch_o)
    if s == args.qst:
        q.insert(args.tpos, late_touch_q)
    if args.bspec and s == args.bfill:
        q = q + [(lambda h: (lambda: b_fill(h)))(h) for h in range(5)]
    if q:
        q.pop(0)()
    if s and not args.chalo:
        halo_mfma(s == 1)
    rd = capture(lambda: halo_reads(base)) if not args.chalo else []
    while q or rd:
        if rd:
            a.I(*rd.pop(0))
        if q:
            q.pop(0)()
        emit_side(hset, args.blate)
    skip = newlabel('nog')
    I(f's_cmp_eq_u32 s{sGS}, s{sW+s}\ns_cbranch_scc0 {skip}')
    I(f'v_add_u32 v{bXR}, {base}, v{bXR}')
    for t in range(4):
        if t:
            I(f'v_xor_b32 v{bXR+1}, {32*t}, v{bXR}')
        I(f'ds_read_b128 {vr(GXF+4*t,4)}, v{bXR+(1 if t else 0)}')
    a.wait(lds='all')
    if args.gerl:
        for t in range(4):
            mfma32(BG, GF + 4 * t, GXF + 4 * t, None if t == 0 else BG)
    a.label(skip)
    if s == args.sq:
        warm_q()
    if s == args.so:
        warm_o(S_WOB)
    if s == args.so + 1 and args.so >= 0:
        warm_o(S_WOA)
    if s == 6:
        ready_issue()
flush(hset)
a.wait(lds='all')
if not args.chalo:
    halo_mfma(False)
if not args.gerl:
    for t in range(4):
        mfma32(BG, GF + 4 * t, GXF + 4 * t, None if t == 0 else BG)
prio(0)
for j in range(0 if args.chalo else 2):
    d = BH + 4 * j
    I(f'v_cvt_pk_bf16_f32 v{d}, v{d}, v{d+1}\nv_cvt_pk_bf16_f32 v{d+1}, v{d+2}, v{d+3}')
    I(f'ds_write_b64 v{bHWR}, {vr(d,2)} offset:{17408*j}')
I(f'ds_write_b32 v{bGW}, v{BG}')
ready_check(BT)
stamp(3)
barrier(vm=None if args.bsplit else 'bfill', lds='all')
for h in range(2):
    I(f'ds_read_b128 {vr(QF+4*h,4)}, v{bQA} offset:{h*1024}')
    I(f'ds_read_b128 {vr(KFB+4*h,4)}, v{bKW} offset:{256+h*4352}')
BHA = [('A', 2), ('A', 3), ('A', 1)][:args.bha]
for f in halves(BHA, 0, 'wo'):
    f()
I('s_branch L_battn')

a.label('L_bcomp')
a.vmq, a.lq = [], []
BACC, BX, BWR_ = 32, 128, 160
if args.upj:
    I(f's_and_b32 s{sC}, s2, 1\ns_lshl3_add_u32 s{sC}, s{sC}, s{sT1}\nv_and_b32 v9, 7, v0\ns_mov_b32 s{S_X+3}, 0x20000\ns_mov_b32 s{sK}, 0')
I('s_waitcnt lgkmcnt(0)')
prologue_w(1)
b_ids()
I(f's_and_b32 s{sT3}, s{sWv}, 1\ns_lshl_b32 s{sT3}, s{sT3}, 13')
x16_addr(bXR, BT, sT3)
w16_addr(bWR, BT)
I(f's_lshl_b32 s{sT0}, s{sHP}, 6\nv_xor_b32 v{bWR}, s{sT0}, v{bWR}\nv_xor_b32 v{bWR+1}, 32, v{bWR}\nv_add_u32 v{bWR+2}, 0x10000, v{bWR}\nv_add_u32 v{bWR+3}, 0x10000, v{bWR+1}')
I('s_waitcnt lgkmcnt(0)')
I(f's_lshl_b32 s{sGS}, s{sWv}, 8\ns_add_u32 s{sGS}, s{sGS}, s2\ns_cmp_eq_u32 s{sGS}, {CLR}\ns_cbranch_scc0 L_noclear')
I(f'v_mov_b32 v{BT}, 0\nv_lshlrev_b32 v{BT+4}, 7, v1')
for j in range(5):
    I(f's_mov_b32 s{sT0}, {FK+8192*j}')
    I(f'buffer_store_dword v{BT}, v{BT+4}, {sr(S_WS,4)}, s{sT0} offen sc1', cond=True)
    I(f'buffer_store_dword v{BT}, v{BT+4}, {sr(S_WS,4)}, s{sT0} offen offset:64 sc1', cond=True)
a.label('L_noclear')
if 'o' in args.tch and args.wst < 0:
    srd_tail(S_WOA, 524288)
    srd_tail(S_WOB, 524288)
    I(f's_and_b32 s{sT0}, s{sC}, 7\ns_lshl_b32 s{sT0}, s{sT0}, 6\nv_add_u32 v{BT}, s{sT0}, v1\ns_lshl_b32 s{sT1}, s{sG}, 7\nv_lshlrev_b32 v{BT}, 10, v{BT}')
    I(f's_lshr_b32 s{sT0}, s{sC}, 3\ns_add_u32 s{sT0}, s{sT0}, 5\ns_cmp_eq_u32 s{sWv}, s{sT0}\ns_cbranch_scc0 L_warm4')
    I(f's_cmp_eq_u32 s{sWv}, 5\ns_cbranch_scc1 L_warm3')
    I(f'buffer_load_dword v{BT+11}, v{BT}, {sr(S_WOB,4)}, s{sT1} offen')
    I('s_branch L_warm4')
    a.label('L_warm3')
    I(f'buffer_load_dword v{BT+11}, v{BT}, {sr(S_WOA,4)}, s{sT1} offen')
    a.label('L_warm4')
if 'q' in args.tch:
    I(f's_cmp_eq_u32 s{sWv}, 4\ns_cbranch_scc0 L_warm5')
    I(f's_load_dwordx2 s[{sM0}:{sM0+1}], s[0:1], 8')
    I(f'v_and_b32 v{BT}, 31, v1\ns_lshl_b32 s{sT0}, s{sC}, 5\nv_add_u32 v{BT}, s{sT0}, v{BT}\nv_mul_u32_u24 v{BT}, 3072, v{BT}\ns_lshl_b32 s{sT1}, s{sG}, 7\nv_add_u32 v{BT}, s{sT1}, v{BT}')
    I(f's_waitcnt lgkmcnt(0)\nglobal_load_dword v{BT+11}, v{BT}, s[{sM0}:{sM0+1}]')
    a.label('L_warm5')
cset = capture(lambda: b_setup('A'))
I(f's_mov_b32 s{sONE}, 1')
if args.cearly:
    flush(cset)
if args.tw:
    page_touch(255)
stamp(1)


JORD = (1, 0, 2)


def c_x(n, i):
    wn, off = win(BS(n >> 1) + 2048 * i)
    I(f'ds_read_b128 {vr(BX+16*(n%2)+4*i,4)}, v{bXR+2*wn+(n&1)} offset:{off}', f'r{n}x')


def c_w(n, t):
    wn, off = win(BS(n >> 1) + 16384 + JORD[t >> 1] * BLK + (n & 1) * 4096)
    assert off + 512 <= 0xFFFF and wn < 2
    for u in range(2):
        I(f'ds_read_b64_tr_b16 {vr(BWR_+4*t+2*u,2)}, v{bWR+2*wn+(t&1)} offset:{off+512*u}', f'r{n}w{t}')


def c_stage_barrier(s, rp):
    if s:
        stamp(4 + s, 'b0')
    barrier(lds='all' if s else None)
    if s:
        stamp(4 + s, 'b')
    if s == 0:
        stamp(2)
        prio(2)
    if s == args.fstage and rp:
        I(f's_cmp_eq_u32 s{sGS}, {CLR}\ns_cbranch_scc0 L_noready')
        I(f's_waitcnt vmcnt(0)\ns_atomic_add s{sONE}, s[{S_DBG}:{S_DBG+1}], 0x0')
        a.label('L_noready')


assert args.cearly
CHX, CH, cHX = 184, 232, 12


def c_h(n):
    wn, off = win(BS(n >> 1) + 40960)
    I(f'ds_read_b128 {vr(CHX,4)}, v{cHX+2*wn+(n&1)} offset:{off}', f'r{n}h')


def c_loop(rp):
    c_stage_barrier(0, rp)
    c_x(0, 0); c_x(0, 1); c_w(0, 0); c_x(0, 2); c_x(0, 3); c_w(0, 1); c_w(0, 2); c_w(0, 3)
    for n in range(16):
        for t in range(6):
            if t == 2 and n % 2 == 1 and n < 15:
                c_stage_barrier((n + 1) >> 1, rp)
            if t % 2 == 0:
                a.wait(lds=f'r{n}w{t+1}')
            m = n + 1
            if t == 0:
                rd = capture(lambda: [c_h(n) if args.chalo else None, c_w(n, 4), c_w(n, 5)])
            elif t == 1:
                pass
            elif m == 16:
                rd = []
            elif t < 4:
                rd = capture(lambda: [c_x(m, 2 * t - 4), c_x(m, 2 * t - 3), c_w(m, t - 2)])
            else:
                rd = capture(lambda: c_w(m, t - 2))
            for i in range(4):
                acc = BACC + 32 * JORD[t >> 1] + 16 * (i >> 1) + 8 * (t & 1) + 4 * (i & 1)
                mfma16(acc, BWR_ + 4 * t, BX + 16 * (n % 2) + 4 * i, None if n == 0 else acc)
                if rd:
                    a.I(*rd.pop(0))
            if args.chalo and t == 1:
                a.wait(lds=f'r{n}h')
                mfma16(CH, BWR_ + 4 * rp, CHX, None if n == 0 else CH)
            if args.chalo and t == 5:
                mfma16(CH + 4, BWR_ + 16 + 4 * rp, CHX, None if n == 0 else CH + 4)


if args.chalo:
    I(f'v_lshrrev_b32 v{BT}, 4, v1\nv_and_b32 v{BT+1}, 7, v1\nv_and_b32 v{BT+2}, 6, v1\nv_xor_b32 v{BT+2}, v{BT+2}, v{BT}\nv_lshlrev_b32 v{cHX}, 7, v{BT+1}\nv_lshl_or_b32 v{cHX}, v{BT+2}, 4, v{cHX}')
    I(f'v_xor_b32 v{cHX+1}, 64, v{cHX}\nv_add_u32 v{cHX+2}, 0x10000, v{cHX}\nv_add_u32 v{cHX+3}, 0x10000, v{cHX+1}')
    I(f'v_lshlrev_b32 v{bHWR}, 5, v{BT+1}\nv_lshl_or_b32 v{bHWR}, v{BT}, 3, v{bHWR}\ns_and_b32 s{sT0}, s{sWv}, 3\ns_mul_i32 s{sT0}, s{sT0}, 4352\ns_add_u32 s{sT0}, s{sT0}, {KI}\nv_add_u32 v{bHWR}, s{sT0}, v{bHWR}')
    if args.bsw:
        I(f'v_and_b32 v{BT}, 4, v1\nv_lshlrev_b32 v{BT}, 2, v{BT}\nv_xor_b32 v{bHWR}, v{bHWR}, v{BT}')
    I(f's_bitcmp1_b32 s{sWv}, 0\ns_cbranch_scc1 L_bodd')
    c_loop(0)
    I('s_branch L_bloopend')
    a.label('L_bodd')
    a.lq = []
    c_loop(1)
    a.label('L_bloopend')
else:
    c_loop(1)
stamp(3)
CT = 164
items = [(1, 1, h) for h in range(2)] + [(0, 1, h) for h in range(2)] + [(1, 0, h) for h in range(2)] + [(0, 0, h) for h in range(2)]
vitems = [(2, k, h) for k in range(2) for h in range(2)]


def b_out(lst, base):
    dsts = []
    for c_, (j, k, h) in enumerate(lst):
        dsts.append(KFB + 4 * h if (j, k) == (1, 0) else QF + 4 * h if (j, k) == (0, 0) else base + 4 * (c_ % 4))
    for c_ in range(len(lst) + 1):
        if c_ < len(lst):
            j, k, h = lst[c_]
            pack16(BACC + 32 * j + 16 * k + 8 * h, dsts[c_])
        if c_ >= 1:
            j, k, h = lst[c_ - 1]
            d = dsts[c_ - 1]
            swap16(d)
            if j == 0:
                if k == 1:
                    I(f'ds_write_b128 v{bQA}, {vr(d,4)} offset:{h*1024}')
            else:
                msk = args.kmask and (j, k) == (1, 0)
                if msk:
                    I('s_mov_b32 exec_lo, 0xff000000\ns_mov_b32 exec_hi, 0xff000000')
                I(f'ds_write_b128 v{bKW}, {vr(d,4)} offset:{(256, 256+17408)[j-1]+h*4352+1024*k}')
                if msk:
                    I('s_mov_b64 exec, -1')


def c_halo_out():
    for j in range(2):
        d = CH + 4 * j
        I(f'v_cvt_pk_bf16_f32 v{d}, v{d}, v{d+1}\nv_cvt_pk_bf16_f32 v{d+1}, v{d+2}, v{d+3}')
        I(f'ds_write_b64 v{bHWR}, {vr(d,2)} offset:{17408*j}')


if args.bsplit:
    b_out(items, CT)
    if args.chalo:
        c_halo_out()
    stamp(5, 'a')
    barrier(lds='all')
    stamp(6, 'a')
    if not args.vlate:
        b_out(vitems, CT)
else:
    b_out(items[:6] + vitems + items[6:], CT)
    if args.chalo:
        c_halo_out()
    barrier(lds='all')
SC, SP, PFR, OO = (32, 48), (64, 80), (164, 176), (96, 112)


def b_scores(own):
    for h in range(2):
        I(f'ds_read_b128 {vr(KP+4*h,4)}, v{bKP} offset:{h*4352}', f'kp{h}')
    if not own:
        a.wait(lds='kp0')
    for h in range(2):
        mfma32(SC[h], KFB + 4 * h, QF + 4 * h, BIAS)
    for h in range(2):
        a.wait(lds=f'kp{h}')
        mfma32(SP[h], KP + 4 * h, QF + 4 * h, BIAS + 4)


if args.vlate:
    b_scores(True)
    b_out(vitems, BT)
    prio(args.bprio)
    I('s_branch L_bsoft')
else:
    prio(args.bprio)
a.label('L_battn')
a.vmq = []
a.lq = []
b_scores(False)
a.label('L_bsoft')
stamp(4)


def v_reads():
    for t in range(2):
        for u in range(2):
            I(f'ds_read_b64_tr_b16 {vr(VA+4*t+2*u,2)}, v{bVR} offset:{17408+256+t*512+u*256}', 'va')
    I(f'ds_read_b32 v{bGR}, v{bGR}', 'va')
    I(f'ds_read_b64_tr_b16 {vr(VA+8,2)}, v{bVR} offset:{17408}', 'va')


QS = 0x3EB8AA3B


def b_attn():
    H = range(2)
    m = [SC[h] + 4 for h in H]
    for b in range(4):
        for h in H:
            I(f'v_max3_f32 v{SC[h]+b}, v{SC[h]+b}, v{SC[h]+4+b}, v{SC[h]+8+b}')
    for b in range(4):
        for h in H:
            I(f'v_max3_f32 v{SC[h]+b}, v{SC[h]+b}, v{SC[h]+12+b}, v{SP[h]+12+b}')
    for h in H:
        I(f'v_max3_f32 v{m[h]}, v{SC[h]}, v{SC[h]+1}, v{SC[h]+2}')
    for h in H:
        I(f'v_max_f32 v{m[h]}, v{m[h]}, v{SC[h]+3}')
    I(f'v_permlane32_swap_b32 v{m[0]}, v{m[1]}')
    I(f'v_max_f32 v{m[0]}, v{m[0]}, v{m[1]}')
    I(f'v_mul_f32 v{m[1]}, {QS|0x80000000:#x}, v{m[0]}\nv_mul_f32 v{m[0]}, {QS|0x80000000:#x}, v{m[0]}')
    I(f'v_permlane32_swap_b32 v{m[0]}, v{m[1]}')
    for b in range(4):
        for h in H:
            I(f'v_fmamk_f32 v{SC[h]+b}, v{SC[h]+b}, {QS:#x}, v{m[h]}')
    for b in range(4):
        for h in H:
            I(f'v_exp_f32 v{SC[h]+b}, v{SC[h]+b}')
    for h in H:
        I(f'v_add_f32 v{m[h]}, v{SC[h]}, v{SC[h]+1}')
    for h in H:
        I(f'v_add_f32 v{m[h]+1}, v{SC[h]+2}, v{SC[h]+3}')
    for h in H:
        I(f'v_add_f32 v{m[h]}, v{m[h]}, v{m[h]+1}')
    I(f'v_permlane32_swap_b32 v{m[0]}, v{m[1]}')
    I(f'v_add_f32 v{m[0]}, v{m[0]}, v{m[1]}\nv_rcp_f32 v{m[0]}, v{m[0]}\nv_mov_b32 v{m[1]}, v{m[0]}')
    I(f'v_permlane32_swap_b32 v{m[0]}, v{m[1]}')
    for b in range(4):
        for h in H:
            I(f'v_mul_f32 v{SC[h]+b}, v{SC[h]+b}, v{m[h]}')
    for e in range(2):
        for h in H:
            I(f'v_cvt_pk_bf16_f32 v{SC[h]+e}, v{SC[h]+2*e}, v{SC[h]+2*e+1}')


def b_mask(h, js):
    for j in js:
        I(f'v_and_b32 v{PFR[h]+j}, v{SC[h]+(j&1)}, v{MSK+j}')


assert args.bsplit and args.bspec and args.bfill == 7
stamp(7, 'a')
stream(capture(b_attn), [(args.vbar2, lambda: (stamp(8, 'a'), I(f's_waitcnt vmcnt({2*len(BHA)}) lgkmcnt(0)\ns_barrier'), stamp(9, 'a'), v_reads()))])
b_mask(0, range(8, 10))
b_mask(1, range(8, 10))
stamp(10, 'a')
a.wait(lds='va')
if args.bsig == 0:
    signal(sFL)
if 'b' in args.force:
    signal(sFL)
    I(f's_and_b32 s{sT0}, s{sG}, 3\ns_cmp_eq_u32 s{sT0}, 2\ns_cbranch_scc0 L_fb')
    I('s_sleep 30')
    a.label('L_fb')
for h in range(2):
    I(f'v_mfma_f32_32x32x8_bf16 {vr(OO[h],16)}, {vr(VA+8,2)}, {vr(PFR[h]+8,2)}, 0')
    b_mask(h, range(5))
for k in range(2):
    for h in range(2):
        mfma32(OO[h], VA + 4 * k, PFR[h] + 4 * k, OO[h])
        if k == 0:
            b_mask(h, range(5, 8))
stamp(11, 'a')
if args.bsig == 1:
    signal(sFL)
for h in range(2):
    O = OO[h] + 8 * h
    for i in range(4):
        I(f'v_cvt_pk_bf16_f32 v{O+i}, v{O+2*i}, v{O+2*i+1}')
    I(f'buffer_store_dwordx4 {vr(O,4)}, v{bOS}, {sr(S_WS,4)}, 0 offen offset:{h*1024} sc1', 'ost')
I(f'buffer_store_dword v{bGR}, v{bGS}, {sr(S_WS,4)}, 0 offen sc1', 'ost')
if args.bspec:
    if 'b' not in args.force and args.bsig == 2:
        signal(sFL)
    I(f's_add_u32 s{sFL}, s{sFL}, 64')
stamp(5)
stamp(12, 'a')
prio(0)
unpark()
p2_consts()
I(f's_cmp_eq_u32 s{sBR}, 0')
I('s_barrier')
stamp(10)
I('s_cbranch_scc1 L_bhi')
for x in fr[:args.nfb]:
    a.I(*x)
if not args.bspec:
    I('s_waitcnt vmcnt(0)')
    signal(sFL)
count_issue(sPF)
for x in fr[args.nfb:]:
    a.I(*x)
I('s_waitcnt vmcnt(0) lgkmcnt(0)')
if args.bspec:
    signal(sFL)
I(f's_cmp_ge_u32 s{sPV}, 8\ns_cbranch_scc0 L_blate')
a.label('L_bgo')
stamp(11)
stamp(5, 'm')
gate_loads()
for k in range(args.npb + 1):
    if k == min(args.bbar, args.npb):
        I('s_barrier')
    if k < args.npb:
        o_load(k)
I('s_branch L_p2mb')
a.label('L_blate')
count_issue(sPF)
I(f's_waitcnt lgkmcnt(0)\ns_cmp_ge_u32 s{sPV}, 8\ns_cbranch_scc1 L_bgo')
count_issue(sPF)
I('s_barrier\ns_branch L_p2chk')
a.label('L_bhi')
I(f'v_subrev_u32 v{vWo2}, 0x8000, v{vWoO}\nv_add_u32 v{pXW}, {XA}, v{pXW}')
lw = halves([('A', g) for g in range(8) if ('A', g) not in BHA], 1, 'wol')
for f in lw[:args.blw]:
    f()
I(f's_waitcnt vmcnt({args.blw})')
signal(sFL)
for f in lw[args.blw:]:
    f()
I('s_waitcnt vmcnt(0)\ns_barrier')
count_issue(sPF)
wo_frags()

a.label('L_p2chk')
a.vmq, a.lq = [], []
sspin(lambda: count_issue(sPF), 8, first=False)
a.label('L_p2go')
stamp(11)
stamp(5, 'm')
def p_step(k, gap=None):
    a.wait(vm=f'o{k}')
    if k in (0, 4, 8, 12, 15):
        stamp(7 + (k + 1) // 4, 'm')
    for c in range(4):
        acc = ACC + 16 * (k < 8) + 4 * c
        mfma16(acc, WOF + 16 * (k & 7) + 4 * c, OF + 4 * k, None if k & 7 == 0 else acc)
        if gap:
            gap(4 * (k - 8) + c)


def project(npre, gap):
    stamp(6, 'm')
    for k in range(16):
        p_step(k, gap if k >= 8 else None)
        if k + npre < 16:
            o_load(k + npre)
    stamp(12)
    stamp(12, 'm')


def own_check(tag):
    I(f's_bitcmp1_b32 s{sPF}, 6\nv_cmp_u_f32 vcc, v{ACC}, v{ACC}')
    I(f's_cbranch_scc1 L_take{tag}\ns_cbranch_vccz L_take{tag}')
    I(f's_add_u32 s{sPF}, s{sPF}, 64')
    q = list(a.lq)
    sspin(lambda: count_issue(sPF), 8)
    for k in range(8, 16):
        o_load(k)
    saved, args.stamps = args.stamps, 0
    for k in range(8, 16):
        p_step(k)
    args.stamps = saved
    a.lq = q
    a.label(f'L_take{tag}')


def give(other):
    lb = newlabel('give')
    I(f's_bitcmp1_b32 s{sPF}, 6\nv_cmp_u_f32 vcc, v{ACC+16}, v{other}')
    I(f's_cbranch_scc1 {lb}\ns_cbranch_vccnz L_redo')
    a.label(lb)


xwrite = lambda e: I(f'ds_write_b128 v{pXW}, {vr(ACC+16+4*e,4)} offset:{e*1024}', 'xw')
I(f's_cmp_eq_u32 s{sBR}, 0\ns_cbranch_scc1 L_p2a')
gate_loads()
for k in range(args.npb):
    o_load(k)
a.label('L_p2mb')
bsteps = {
    0: lambda: I(f'v_permlane32_swap_b32 v{pG}, v{pG+1}'),
    1: lambda: I(f'v_add_f32 v{pG}, v{pG}, v{pG+1}'),
    2: lambda: I(f'v_mov_b32 v{pG+1}, v{pG}'),
    4: lambda: I(f'v_permlane16_swap_b32 v{pG}, v{pG+1}'),
    5: lambda: I(f'v_add_f32 v{pG}, v{pG}, v{pG+1}'),
    6: lambda: give(pG),
    7: lambda: (I(f'v_min_u32 v{pG}, -2, v{pG}'), xwrite(0)),
    8: lambda: I(f'v_mov_b32 v{pG+1}, v{pG}'),
    10: lambda: (I(f'v_permlane32_swap_b32 v{pG}, v{pG+1}'), xwrite(1)),
    13: lambda: xwrite(2), 16: lambda: xwrite(3),
    22: lambda: (a.wait(lds='xw'), I(f'ds_write_b32 v{pLF+1}, v{pG+1}')),
}
project(args.npb, lambda i: bsteps.get(i, lambda: None)())
spin(lambda: I(f'ds_read_b32 v{pG+1}, v{pLF}'), lambda: I(f'v_cmp_eq_u32 vcc, -1, v{pG+1}'), lds=True)
for e in range(4):
    I(f'ds_read_b128 {vr(OF+4*e,4)}, v{pXR} offset:{XB+e*1024}', f'xb{e}')
I(f'v_add_f32 v{pT}, v{pG}, v{pG+1}\nv_mul_f32 v{pT}, {NLOG2E:#x}, v{pT}\nv_exp_f32 v{pT}, v{pT}\nv_add_f32 v{pT}, 1.0, v{pT}\nv_rcp_f32 v{pG}, v{pT}')
I(f'v_sub_f32 v{pT}, 1.0, v{pG}')
I(f'ds_write_b32 v{pLF}, v{pG} offset:{XGO}')
own_check('b')
for e in range(4):
    a.wait(lds=f'xb{e}')
    for i in range(4 * e, 4 * e + 4):
        I(f'v_add_f32 v{ACC+i}, v{ACC+i}, v{OF+i}')
    for i in range(4 * e, 4 * e + 4):
        I(f'v_mul_f32 v{ACC+i}, v{ACC+i}, v{pT}')
    I(f'ds_write_b128 v{pXR}, {vr(ACC+4*e,4)} offset:{XB+e*1024}')
barrier(lds='all')
I('s_branch L_done')
a.label('L_redo')
I(f's_add_u32 s{sPF}, s{sPF}, 64\ns_mov_b32 s{sPV}, 0\ns_waitcnt vmcnt(0)\ns_nop 7\ns_branch L_p2chk')
a.label('L_p2a')
a.vmq, a.lq = [], []
prio(args.aprio)
for k in range(NPRE):
    o_load(k)
rds = capture(lambda: [I(f'ds_read_b32 v{pG}, v{pLF} offset:{XGO}', 'f')] + [(I(f'ds_read_b128 {vr(OF+4*e,4)}, v{pXR} offset:{XA+e*1024}', 'f'), I(f'ds_read_b128 {vr(OF+16+4*e,4)}, v{pXR} offset:{XB+e*1024}', 'f')) for e in range(4)])
fm = [(f'v_fmac_f32 v{OF+16+i}, v{OF+i}, v{pG}', None) for i in range(16)]


def agap(i):
    if i == args.xw0:
        give(ACC + 16)
    if i >= args.xw0 + 1 and (i - args.xw0 - 1) % 2 == 0 and (i - args.xw0 - 1) // 2 < 4:
        xwrite((i - args.xw0 - 1) // 2)
    if i == args.xb:
        barrier(lds='all')
    if i >= args.xb:
        for _ in range(2):
            if rds:
                a.I(*rds.pop(0))
    if i == args.xf:
        assert not rds
        a.wait(lds='all')
    if i >= args.xf:
        for _ in range(2):
            if fm:
                a.I(*fm.pop(0))


project(NPRE, agap)
flush(fm)
own_check('a')
for i in range(8):
    I(f'v_pk_fma_f32 {vr(ACC+2*i,2)}, {vr(ACC+2*i,2)}, {vr(pG,2)}, {vr(OF+16+2*i,2)} op_sel_hi:[1,0,1]')
    if i >= 1:
        I(f'v_cvt_pk_bf16_f32 v{ACC+16+i-1}, v{ACC+2*i-2}, v{ACC+2*i-1}')
    if i == 6:
        swap16(ACC + 16)
        I(f'buffer_store_dwordx4 {vr(ACC+16,4)}, v{pOUT}, {sr(S_OUT,4)}, s{sPOUT} offen {args.outsc}')
I(f'v_cvt_pk_bf16_f32 v{ACC+23}, v{ACC+14}, v{ACC+15}')
swap16(ACC + 20)
I(f'buffer_store_dwordx4 {vr(ACC+20,4)}, v{pOUT}, {sr(S_OUT,4)}, s{sPOUT} offen offset:64 {args.outsc}')
a.label('L_done')
if args.pad:
    stamp(13)
if args.stamps:
    I('s_waitcnt vmcnt(0)')
    stamp(13)
    I('s_waitcnt lgkmcnt(0)')
    for k in range(NST):
        I(f'v_mov_b32 v{32+k}, s{STAMP_S+2*k}')
    I(f's_lshl_b32 s{sT0}, s2, 3\ns_add_u32 s{sT0}, s{sT0}, s{sWv}\ns_lshl_b32 s{sT0}, s{sT0}, 6\ns_add_u32 s{sT0}, s{sT0}, {STAMPS}')
    I('s_mov_b64 exec, 1')
    for j in range(4):
        I(f'buffer_store_dwordx4 {vr(32+4*j,4)}, off, {sr(S_WS,4)}, s{sT0} offset:{16*j}')
a.label('L_end')
I('s_endpgm')
a.raw(f'.if (L_end - {NAME}_kernel) > 49152\n.error "code prefetch too short"\n.endif\n.fill (49664 - (L_end - {NAME}_kernel)) / 4, 4, 0xbf810000')
a.raw('.section .rodata,"a"')
a.raw('.p2align 6')
a.raw(f'.amdhsa_kernel {NAME}_kernel')
a.raw('  .amdhsa_next_free_vgpr 256\n  .amdhsa_next_free_sgpr 102\n  .amdhsa_accum_offset 256\n  .amdhsa_group_segment_fixed_size 0\n  .amdhsa_kernarg_size 88\n  .amdhsa_user_sgpr_count 2\n  .amdhsa_user_sgpr_kernarg_segment_ptr 1\n  .amdhsa_system_sgpr_workgroup_id_x 1')
a.raw('.end_amdhsa_kernel')
if args.align:
    from align import align
    a.lines = '\n'.join(a.lines).split('\n')
    print('widened', align(a.lines))
open(args.o, 'w').write(a.text())
json.dump(dict(OSTR=OSTR, OA=OA, OB=OB, KSTR=KSTR, KVP=KVP, GP=GP, FK=FK, FA=FA, FB=FB, STAMPS=STAMPS, CYC=int(args.stamps == 2), NST=NST, XR=args.xr), open(args.o + '.json', 'w'))
print('lines', len(a.lines), 'nops', a.nops)
```
